```python
import torch

def _softmax(x, axis=-1):
    return torch.softmax(x, dim=axis)
def _gelu(x):
    return torch.nn.functional.gelu(x, approximate="tanh")
def _silu(x):
    return torch.nn.functional.silu(x)
def _sigmoid(x):
    return torch.sigmoid(x)
def _layernorm(x, axis=-1, eps=1e-5):
    m = x.mean(dim=axis, keepdim=True)
    v = x.var(dim=axis, keepdim=True, unbiased=False)
    return (x - m) / torch.sqrt(v + eps)
def _scatter_add(tgt, idx, src, axis=0):
    return tgt.clone().index_add_(axis, idx, src)
def _segment_sum(src, seg, n):
    out = torch.zeros((n,) + src.shape[1:], dtype=src.dtype)
    return out.index_add_(0, seg, src)
def _pad(x, pw):
    flat = tuple(v for pair in reversed(pw) for v in pair)
    return torch.nn.functional.pad(x, flat)

kernel_name = 'standalone__layernorm_linear__sampling'

def setup_inputs():

    _w = (lambda a: (lambda t: t.to(torch.bfloat16) if t.is_floating_point() else t)(torch.as_tensor(a)))
    B, S, D = 1024, 8, 576
    return {
        "x": _w((lambda *s: torch.randn(*s, dtype=torch.bfloat16) * 0.05)(B, S, D)),
        "g": _w((lambda *s: torch.randn(*s, dtype=torch.bfloat16) * 0.05)(D) + 1.0),
        "b": _w((lambda *s: torch.randn(*s, dtype=torch.bfloat16) * 0.4)(D)),
        "w": _w((lambda *s: torch.randn(*s, dtype=torch.bfloat16) * 0.05)(D, D)),
    }

def reference(x, g, b, w):
    return (_layernorm(x, axis=-1) * g + b) @ w
```

```python
import re
VR = re.compile(r'\bv\[(\d+):(\d+)\]|\bv(\d+)\b')
def vregs(s):
    out = []
    for m in VR.finditer(s):
        if m.group(1) is not None: out.append(list(range(int(m.group(1)), int(m.group(2)) + 1)))
        else: out.append([int(m.group(3))])
    return out
def classify(t):
    t0 = t.split(';')[0].strip()
    if not t0 or t0.endswith(':') or t0.startswith('.'): return ('none', [], [])
    op = t0.split()[0]
    rest = t0[len(op):]
    ops = vregs(rest)
    flat = lambda L: [r for x in L for r in x]
    if op.startswith('ds_read') or op.startswith('ds_bpermute') or op.startswith('ds_swizzle'): return ('dsr', ops[0], flat(ops[1:]))
    if op.startswith('ds_'): return ('dsw', [], flat(ops))
    if op.startswith('buffer_load') or op.startswith('global_load'):
        if ' lds' in t0: return ('vmem', [], flat(ops))
        return ('vmeml', ops[0], flat(ops[1:]))
    if op.startswith('buffer_') or op.startswith('global_'): return ('vmem', [], flat(ops))
    if op.startswith('v_mfma'): return ('mfma', ops[0], flat(ops[1:]))
    if op.startswith('v_cmp') or op.startswith('v_readfirstlane') or op.startswith('v_readlane'): return ('valu', [], flat(ops))
    if op.startswith('v_fmac') or op.startswith('v_dot2c') or 'swap' in op: return ('valu', flat(ops) if 'swap' in op else ops[0], flat(ops))
    if op.startswith('v_'): return ('valu', ops[0] if ops else [], flat(ops[1:]))
    return ('salu', [], [])
def auto_lgkm(instrs):
    out = []; q = []
    for t in instrs:
        cls, w, r = classify(t)
        m = re.search(r'lgkmcnt\((\d+)\)', t)
        if t.strip().startswith('s_waitcnt') and m:
            n = int(m.group(1)); q = q[len(q) - n:] if n < len(q) else q
            if n == 0: q = []
            out.append(t); continue
        touched = set(r) | set(w)
        idx = -1
        for i, d in enumerate(q):
            if d and (d & touched): idx = i
        if idx >= 0:
            n = len(q) - 1 - idx
            n = min(n, 15)
            out.append(f"s_waitcnt lgkmcnt({n})")
            q = q[len(q) - n:] if n > 0 else []
        out.append(t)
        if cls == 'dsr': q.append(set(w))
        elif cls == 'dsw': q.append(None)
    return out
def interleave(a, b, pattern=None):
    out = []; ia = ib = 0; na, nb = len(a), len(b)
    while ia < na or ib < nb:
        if ib >= nb or (ia < na and ia * nb <= ib * na): out.append(a[ia]); ia += 1
        else: out.append(b[ib]); ib += 1
    return out
class Regs:
    def __init__(self, start=0): self.n = start; self.names = {}
    def alloc(self, name, cnt=1, align=1):
        self.n = (self.n + align - 1) // align * align
        r = self.n; self.n += cnt; self.names[name] = r; return r
def v(r, n=1): return f"v{r}" if n == 1 else f"v[{r}:{r+n-1}]"
def s(r, n=1): return f"s{r}" if n == 1 else f"s[{r}:{r+n-1}]"
```

```python
import sys
from asmlib import *
opts = dict(a.split("=") for a in sys.argv[1:] if "=" in a)
XNT = opts.get("xnt", "1") == "1"
ROT = opts.get("rot", "1") == "1"
STAMP = opts.get("stamp", "0") == "1"
ONT = opts.get("ont", "0") == "1"
NAME = "standalone__layernorm_linear__sampling_kernel"
STG = 36864; XOFF = 24576
GF32 = 147456; XE = GF32 + 2304; GBF = XE + 1152; BBF = GBF + 1152; STATS = BBF + 1152; ED = STATS + 896; XP = ED + 1536
LDSB = XP + 64
RS = 400
out = []
A = out.append
hdr = open("standalone__layernorm_linear__sampling.s.ref").read().split("; Override launch")[0]
A(hdr.rstrip())
A(f"; @launch grid=(256,1,1) block=(512,1,1) lds={LDSB}")
A('.amdgcn_target "amdgcn-amd-amdhsa--gfx950"')
A(".text"); A(f".globl {NAME}"); A(".p2align 8"); A(f".type {NAME},@function"); A(f"{NAME}:")
SX, SW, SG, SB, SO = 16, 20, 24, 28, 32
sWave, sRb, sCs, sCg = 36, 37, 38, 39
cA, cB, cC = 40, 41, 42
sI = 43
st0, st1, st2, st3 = 44, 45, 46, 47
t0, t1, t2, t3 = 48, 49, 51, 52
sMask = 50
sXm = 53
sWm = 54
sEx = 56
sSoX, sSoW = 58, 59
SD = 60
R = Regs(1)
vLane = R.alloc("lane"); vT = R.alloc("t", 8)
vWd = R.alloc("wdma", 3); vXd = R.alloc("xdma")
vWrB = R.alloc("wrb"); vWr = R.alloc("wr"); vXrB = R.alloc("xrb"); vXr = R.alloc("xr")
vPB = R.alloc("pb"); vP = R.alloc("p"); vGB = R.alloc("gb"); vG = R.alloc("g"); vSB = R.alloc("sb"); vS = R.alloc("s")
vStL = R.alloc("stl", 5); vStG = R.alloc("stg", 5)
vSt = R.alloc("stats", 8)
vGq = R.alloc("gq", 8, 4)
vRaw = R.alloc("raw", 8, 4)
vTm = R.alloc("tmp", 8, 2)
vAcc = R.alloc("acc", 48, 4)
vWF = R.alloc("wf", 24, 4)
vXF = R.alloc("xf", 32, 4)
vE = R.alloc("extra", 12, 4)
NV = R.n

if STAMP: A("s_memrealtime s[64:65]")
A("s_cmp_ge_u32 s2, 255"); A("s_cbranch_scc1 L_end")
A("s_load_dwordx8 s[4:11], s[0:1], 0")
A("s_load_dwordx2 s[12:13], s[0:1], 32")
if STAMP: A("s_load_dwordx2 s[14:15], s[0:1], 48")
A(f"v_lshrrev_b32 {v(vT)}, 6, v0"); A(f"v_and_b32 {v(vLane)}, 63, v0")
A(f"s_and_b32 {s(t0)}, s2, 7"); A(f"s_lshl_b32 {s(t0)}, {s(t0)}, 5"); A(f"s_lshr_b32 {s(t1)}, s2, 3"); A(f"s_add_u32 {s(t0)}, {s(t0)}, {s(t1)}")
A(f"v_readfirstlane_b32 {s(sWave)}, {v(vT)}")
A(f"s_mul_i32 {s(sRb)}, {s(t0)}, 21846"); A(f"s_lshr_b32 {s(sRb)}, {s(sRb)}, 16")
A(f"s_mul_i32 {s(t1)}, {s(sRb)}, 3"); A(f"s_sub_u32 {s(sCs)}, {s(t0)}, {s(t1)}")
A(f"s_and_b32 {s(sCg)}, {s(sWave)}, 3")
A(f"s_mov_b32 {s(sMask)}, 0xffff0000")
if ROT:
    A(f"s_mul_i32 {s(t0)}, {s(sRb)}, 21846"); A(f"s_lshr_b32 {s(t0)}, {s(t0)}, 16")
    A(f"s_mul_i32 {s(t1)}, {s(t0)}, 3"); A(f"s_sub_u32 {s(t1)}, {s(sRb)}, {s(t1)}")
    A(f"s_mul_i32 {s(t2)}, {s(t0)}, 21846"); A(f"s_lshr_b32 {s(t2)}, {s(t2)}, 16"); A(f"s_mul_i32 {s(t2)}, {s(t2)}, 3"); A(f"s_sub_u32 {s(t0)}, {s(t0)}, {s(t2)}")
    A(f"s_mul_i32 {s(t0)}, {s(t0)}, 3")
    A(f"s_add_u32 {s(t1)}, {s(t1)}, {s(sCs)}")
    for k, cr in enumerate((cA, cB, cC)):
        if k: A(f"s_add_u32 {s(t1)}, {s(t1)}, 1")
        A(f"s_cmp_ge_u32 {s(t1)}, 3"); A(f"s_cselect_b32 {s(t2)}, 3, 0"); A(f"s_sub_u32 {s(t1)}, {s(t1)}, {s(t2)}")
        A(f"s_add_u32 {s(cr)}, {s(t0)}, {s(t1)}")
else:
    A(f"s_mov_b32 {s(cA)}, 0"); A(f"s_mov_b32 {s(cB)}, 1"); A(f"s_mov_b32 {s(cC)}, 2")
A(f"s_mov_b32 {s(st0)}, 0"); A(f"s_mov_b32 {s(st1)}, {STG}"); A(f"s_mov_b32 {s(st2)}, {2*STG}"); A(f"s_mov_b32 {s(st3)}, {3*STG}")
A(f"s_lshl_b32 {s(t0)}, {s(sCg)}, 1"); A(f"s_add_u32 {s(t0)}, {s(t0)}, 4"); A(f"s_cmp_lt_u32 {s(sWave)}, 4"); A(f"s_cselect_b32 {s(t3)}, {s(sCg)}, {s(t0)}")
A(f"s_lshl_b32 {s(sXm)}, {s(t3)}, 10"); A(f"s_add_u32 {s(sXm)}, {s(sXm)}, {XOFF}")
A(f"s_lshl_b32 {s(sWm)}, {s(sWave)}, 10")
T = [vT + i for i in range(8)]
L_ = v(vLane)
A(f"v_lshrrev_b32 {v(T[0])}, 3, {L_}"); A(f"v_and_b32 {v(T[0])}, 2, {v(T[0])}"); A(f"v_and_b32 {v(T[1])}, 3, {L_}"); A(f"v_xor_b32 {v(T[0])}, {v(T[0])}, {v(T[1])}")
A(f"v_lshrrev_b32 {v(T[1])}, 5, {L_}"); A(f"v_lshl_add_u32 {v(T[0])}, {v(T[1])}, 2, {v(T[0])}")
A(f"v_bfe_u32 {v(T[1])}, {L_}, 2, 3")
A(f"s_mul_i32 {s(t0)}, {s(sRb)}, 96"); A(f"s_lshl_b32 {s(t1)}, {s(t3)}, 3"); A(f"s_add_u32 {s(t0)}, {s(t0)}, {s(t1)}"); A(f"s_mul_i32 {s(t0)}, {s(t0)}, 1152")
A(f"v_mul_u32_u24 {v(T[2])}, 1152, {v(T[1])}"); A(f"v_lshl_add_u32 {v(T[2])}, {v(T[0])}, 4, {v(T[2])}"); A(f"v_add_u32 {v(vXd)}, {s(t0)}, {v(T[2])}")
A(f"v_lshlrev_b32 {v(T[3])}, 4, {v(T[0])}")
A(f"v_lshlrev_b32 {v(vGB)}, 5, {v(T[0])}"); A(f"v_add_u32 {v(vGB)}, {GF32}, {v(vGB)}")
A(f"s_mul_i32 {s(t0)}, {s(sCs)}, 384")
for n in range(3):
    A(f"v_add_u32 {v(T[4])}, {n*512}, v0")
    A(f"v_mul_u32_u24 {v(T[5])}, 2731, {v(T[4])}"); A(f"v_lshrrev_b32 {v(T[5])}, 16, {v(T[5])}")
    A(f"v_mul_u32_u24 {v(T[6])}, 24, {v(T[5])}"); A(f"v_sub_u32 {v(T[4])}, {v(T[4])}, {v(T[6])}")
    A(f"v_and_b32 {v(T[6])}, 2, {v(T[5])}")
    A(f"v_lshrrev_b32 {v(T[7])}, 1, {v(T[5])}"); A(f"v_and_b32 {v(T[7])}, 4, {v(T[7])}")
    A(f"v_or_b32 {v(T[6])}, {v(T[6])}, {v(T[7])}"); A(f"v_xor_b32 {v(T[4])}, {v(T[4])}, {v(T[6])}")
    A(f"v_mul_u32_u24 {v(T[5])}, 1152, {v(T[5])}"); A(f"v_lshl_add_u32 {v(T[4])}, {v(T[4])}, 4, {v(T[5])}"); A(f"v_add_u32 {v(vWd+n)}, {s(t0)}, {v(T[4])}")
A("s_waitcnt lgkmcnt(0)")
for srd, p, nb in ((SX, 4, 9437184), (SG, 6, 1152), (SB, 8, 1152), (SW, 10, 663552), (SO, 12, 9437184)):
    A(f"s_mov_b32 {s(srd)}, {s(p)}"); A(f"s_mov_b32 {s(srd+1)}, {s(p+1)}"); A(f"s_mov_b32 {s(srd+2)}, {nb}"); A(f"s_mov_b32 {s(srd+3)}, 0x20000")
if STAMP:
    A(f"s_mov_b32 {s(SD)}, s14"); A(f"s_mov_b32 {s(SD+1)}, s15"); A(f"s_mov_b32 {s(SD+2)}, 0x100000"); A(f"s_mov_b32 {s(SD+3)}, 0x20000")
xnt = " nt" if XNT else ""
def dma_chunk(role, creg, streg, oob=None):
    o = []
    o.append(f"s_lshl_b32 {s(sSoX)}, {s(creg)}, 7"); o.append(f"s_mul_i32 {s(sSoW)}, {s(creg)}, 73728")
    if oob:
        o.append(f"s_cmp_ge_u32 {s(sI)}, 6"); o.append(f"s_cselect_b32 {s(sSoX)}, 0x40000000, {s(sSoX)}"); o.append(f"s_cselect_b32 {s(sSoW)}, 0x40000000, {s(sSoW)}")
    o.append(f"s_add_u32 m0, {s(streg)}, {s(sXm)}"); o.append(f"s_add_u32 {s(t0)}, {s(streg)}, {s(sWm)}")
    o.append(f"buffer_load_dwordx4 {v(vXd)}, {s(SX,4)}, {s(sSoX)} offen{xnt} lds")
    if role == "B":
        o.append("s_add_u32 m0, m0, 1024"); o.append(f"s_add_u32 {s(sSoX)}, {s(sSoX)}, 9216")
        o.append(f"buffer_load_dwordx4 {v(vXd)}, {s(SX,4)}, {s(sSoX)} offen{xnt} lds")
    for n in range(3):
        o.append(f"s_add_u32 m0, {s(t0)}, {n*8192}"); o.append("s_nop 0")
        o.append(f"buffer_load_dwordx4 {v(vWd+n)}, {s(SW,4)}, {s(sSoW)} offen lds")
    return o
A(f"s_lshl_b32 {s(t0)}, {s(cA)}, 7")
A(f"buffer_load_dwordx4 {v(vE,4)}, {v(T[3])}, {s(SG,4)}, {s(t0)} offen")
A(f"s_cmp_ge_u32 {s(sWave)}, 4"); A("s_cbranch_scc1 L_roleB")

def common_addr(role):
    o = []; a = o.append
    a(f"v_lshrrev_b32 {v(T[0])}, 4, {L_}"); a(f"v_bfe_u32 {v(T[1])}, {L_}, 2, 2")
    a(f"v_lshl_add_u32 {v(T[2])}, {v(T[0])}, 3, {v(T[1])}"); a(f"v_mul_u32_u24 {v(T[2])}, 384, {v(T[2])}")
    a(f"v_and_b32 {v(T[4])}, 2, {v(T[1])}"); a(f"v_and_b32 {v(T[5])}, 1, {v(T[0])}"); a(f"v_lshl_or_b32 {v(T[4])}, {v(T[5])}, 2, {v(T[4])}")
    a(f"v_bfe_u32 {v(T[5])}, {L_}, 1, 1"); a(f"s_lshl_b32 {s(t0)}, {s(sCg)}, 1"); a(f"v_add_u32 {v(T[5])}, {s(t0)}, {v(T[5])}"); a(f"v_xor_b32 {v(T[4])}, {v(T[4])}, {v(T[5])}")
    a(f"v_lshl_add_u32 {v(T[2])}, {v(T[4])}, 4, {v(T[2])}"); a(f"v_and_b32 {v(T[5])}, 1, {L_}"); a(f"v_lshl_add_u32 {v(vWrB)}, {v(T[5])}, 3, {v(T[2])}")
    a(f"v_and_b32 {v(T[1])}, 7, {L_}"); a(f"v_lshrrev_b32 {v(T[2])}, 1, {v(T[1])}"); a(f"v_and_b32 {v(T[2])}, 2, {v(T[2])}"); a(f"v_xor_b32 {v(T[2])}, {v(T[2])}, {v(T[0])}")
    a(f"v_lshl_add_u32 {v(T[2])}, {v(T[1])}, 2, {v(T[2])}"); a(f"v_lshlrev_b32 {v(T[2])}, 4, {v(T[2])}")
    a(f"v_bfe_u32 {v(T[4])}, {L_}, 3, 1"); a(f"v_lshl_add_u32 {v(T[2])}, {v(T[4])}, 10, {v(T[2])}")
    a(f"v_add_u32 {v(vXrB)}, {XOFF + (8192 if role == 'B' else 0)}, {v(T[2])}")
    a(f"v_lshlrev_b32 {v(T[2])}, 4, {L_}"); a(f"v_add_u32 {v(vPB)}, {s(sXm)}, {v(T[2])}")
    if role == "B":
        a(f"v_and_b32 {v(T[1])}, 15, {L_}"); a(f"v_min_u32 {v(T[1])}, 2, {v(T[1])}"); a(f"v_mul_u32_u24 {v(T[1])}, 1152, {v(T[1])}")
        a(f"v_lshl_add_u32 {v(T[1])}, {v(T[0])}, 4, {v(T[1])}"); a(f"v_add_u32 {v(vSB)}, {XE}, {v(T[1])}")
    a(f"s_mul_i32 {s(t0)}, {s(sRb)}, {96*1152}"); a(f"s_mul_i32 {s(t1)}, {s(sCs)}, 384"); a(f"s_add_u32 {s(t0)}, {s(t0)}, {s(t1)}")
    a(f"s_add_u32 {s(t2)}, {s(sRb)}, 8160"); a(f"s_mul_i32 {s(t2)}, {s(t2)}, 1152"); a(f"s_add_u32 {s(t2)}, {s(t2)}, {s(t1)}")
    for it in range(5):
        a(f"v_add_u32 {v(T[4])}, {it*512}, v0")
        a(f"v_mul_u32_u24 {v(T[5])}, 2731, {v(T[4])}"); a(f"v_lshrrev_b32 {v(T[5])}, 16, {v(T[5])}")
        a(f"v_mul_u32_u24 {v(T[6])}, 24, {v(T[5])}"); a(f"v_sub_u32 {v(T[4])}, {v(T[4])}, {v(T[6])}"); a(f"v_lshlrev_b32 {v(T[4])}, 4, {v(T[4])}")
        a(f"v_mul_u32_u24 {v(T[6])}, {RS}, {v(T[5])}"); a(f"v_add_u32 {v(vStL+it)}, {v(T[6])}, {v(T[4])}")
        a(f"v_mul_u32_u24 {v(T[6])}, 1152, {v(T[5])}"); a(f"v_add3_u32 {v(vStG+it)}, {v(T[6])}, {v(T[4])}, {s(t0)}")
        if it == 4:
            a(f"v_add_u32 {v(T[6])}, {s(t2)}, {v(T[4])}")
            a(f"v_cmp_eq_u32 vcc, 96, {v(T[5])}"); a("s_nop 1"); a(f"v_cndmask_b32 {v(vStG+it)}, {v(vStG+it)}, {v(T[6])}, vcc")
            a(f"v_mov_b32 {v(T[6])}, 0x40000000")
            a(f"v_cmp_lt_u32 vcc, 96, {v(T[5])}"); a("s_nop 1"); a(f"v_cndmask_b32 {v(vStG+it)}, {v(vStG+it)}, {v(T[6])}, vcc")
    nacc = 48 if role == "A" else 36
    for i in range(nacc): a(f"v_mov_b32 {v(vAcc+i)}, 0")
    for i in range(8): a(f"v_mov_b32 {v(vSt+i)}, 0")
    return o

def prep_valu(raw, st, G):
    o = []
    for d in range(4):
        lo, hi = vTm + 2 * (d % 4), vTm + 2 * (d % 4) + 1
        o.append(f"v_lshlrev_b32 {v(lo)}, 16, {v(raw+d)}"); o.append(f"v_and_b32 {v(hi)}, {s(sMask)}, {v(raw+d)}")
        o.append(f"v_add_f32 {v(st)}, {v(st)}, {v(lo)}"); o.append(f"v_add_f32 {v(st+1)}, {v(st+1)}, {v(hi)}")
        o.append(f"v_fmac_f32 {v(st+2)}, {v(lo)}, {v(lo)}"); o.append(f"v_fmac_f32 {v(st+3)}, {v(hi)}, {v(hi)}")
        o.append(f"v_mul_f32 {v(lo)}, {v(lo)}, {v(G+2*d)}"); o.append(f"v_mul_f32 {v(hi)}, {v(hi)}, {v(G+2*d+1)}")
        o.append(f"v_cvt_pk_bf16_f32 {v(raw+d)}, {v(lo)}, {v(hi)}")
    return o
def prep_block(role, n, first=False):
    ng = 1 if role == "A" else 2
    o = []
    if not first:
        o.append(f"s_lshl_b32 {s(t0)}, {s(cB)}, 8"); o.append(f"v_add_u32 {v(vG)}, {s(t0)}, {v(vGB)}")
        o.append(f"v_add_u32 {v(vP)}, {s(st1)}, {v(vPB)}")
        o.append(f"ds_read_b128 {v(vGq,4)}, {v(vG)}"); o.append(f"ds_read_b128 {v(vGq+4,4)}, {v(vG)} offset:16")
    else:
        o.append(f"v_mov_b32 {v(vP)}, {v(vPB)}")
    o.append(f"s_waitcnt vmcnt({2*n+3})")
    for g in range(ng): o.append(f"ds_read_b128 {v(vRaw+4*g,4)}, {v(vP)} offset:{g*1024}")
    if first:
        for d in range(4):
            o.append(f"v_lshlrev_b32 {v(vGq+2*d)}, 16, {v(vE+d)}"); o.append(f"v_and_b32 {v(vGq+2*d+1)}, {s(sMask)}, {v(vE+d)}")
    for g in range(ng):
        o += prep_valu(vRaw + 4 * g, vSt + 4 * g, vGq)
        o.append(f"ds_write_b128 {v(vP)}, {v(vRaw+4*g,4)} offset:{g*1024}")
    return o
def mfma_block(role):
    nT = 4 if role == "A" else 3
    o = []
    o.append(f"v_add_u32 {v(vWr)}, {s(st0)}, {v(vWrB)}"); o.append(f"v_add_u32 {v(vXr)}, {s(st0)}, {v(vXrB)}")
    if role == "B":
        o.append(f"s_lshl_b32 {s(t0)}, {s(cA)}, 7"); o.append(f"v_add_u32 {v(vS)}, {s(t0)}, {v(vSB)}")
    rd = [[], []]; mm = [[], []]
    for hh in range(2):
        wf = vWF + 12 * hh; xf = vXF + 16 * hh
        def wread(u):
            return [f"ds_read_b64_tr_b16 {v(wf+4*u,2)}, {v(vWr)} offset:{u*128 + hh*12288}",
                    f"ds_read_b64_tr_b16 {v(wf+4*u+2,2)}, {v(vWr)} offset:{u*128 + hh*12288 + 1536}"]
        def xread(Tt):
            if role == "B" and Tt == 2: return [f"ds_read_b128 {v(xf+4*Tt,4)}, {v(vS)} offset:{hh*64}"]
            return [f"ds_read_b128 {v(xf+4*Tt,4)}, {v(vXr)} offset:{Tt*2048 + hh*512}"]
        rd[hh] = wread(0) + xread(0) + wread(1) + wread(2)
        for Tt in range(1, nT): rd[hh] += xread(Tt)
        for Tt in range(nT):
            for u in range(3):
                a_ = vAcc + (Tt * 3 + u) * 4
                mm[hh].append(f"v_mfma_f32_16x16x32_bf16 {v(a_,4)}, {v(wf+4*u,4)}, {v(xf+4*Tt,4)}, {v(a_,4)}")
    o += rd[0]
    o += interleave(mm[0], rd[1])
    o += mm[1]
    return o
def stats_reduce_fin(S1a, S1b, S2a, S2b, res):
    o = []; a = o.append
    t = vTm
    a(f"v_add_f32 {v(S1a)}, {v(S1a)}, {v(S1b)}"); a(f"v_add_f32 {v(S2a)}, {v(S2a)}, {v(S2b)}"); a("s_nop 1")
    for qp in ("[1,0,3,2]", "[2,3,0,1]"):
        a(f"v_add_f32_dpp {v(S1a)}, {v(S1a)}, {v(S1a)} quad_perm:{qp} row_mask:0xf bank_mask:0xf")
        a(f"v_add_f32_dpp {v(S2a)}, {v(S2a)}, {v(S2a)} quad_perm:{qp} row_mask:0xf bank_mask:0xf"); a("s_nop 1")
    a(f"v_mov_b32 {v(S1b)}, {v(S1a)}"); a(f"v_mov_b32 {v(S2b)}, {v(S2a)}"); a("s_nop 1")
    a(f"v_permlane32_swap_b32 {v(S1a)}, {v(S1b)}"); a(f"v_permlane32_swap_b32 {v(S2a)}, {v(S2b)}"); a("s_nop 1")
    a(f"v_add_f32 {v(S1a)}, {v(S1a)}, {v(S1b)}"); a(f"v_add_f32 {v(S2a)}, {v(S2a)}, {v(S2b)}")
    a(f"v_mul_f32 {v(S1a)}, 0x3ae38e39, {v(S1a)}"); a(f"v_mul_f32 {v(S2a)}, 0x3ae38e39, {v(S2a)}")
    a(f"v_fma_f32 {v(S2a)}, -{v(S1a)}, {v(S1a)}, {v(S2a)}"); a(f"v_max_f32 {v(S2a)}, 0, {v(S2a)}")
    a(f"v_cvt_pk_bf16_f32 {v(t)}, {v(S1a)}, {v(S2a)}")
    a(f"v_and_b32 {v(S2a)}, {s(sMask)}, {v(t)}"); a(f"v_lshlrev_b32 {v(S1a)}, 16, {v(t)}")
    a(f"v_add_f32 {v(S2a)}, 0x3727c5ac, {v(S2a)}")
    a(f"v_cvt_pk_bf16_f32 {v(t)}, {v(S2a)}, {v(S2a)}"); a(f"v_and_b32 {v(S2a)}, {s(sMask)}, {v(t)}")
    a(f"v_sqrt_f32 {v(S2a)}, {v(S2a)}"); a("s_nop 0")
    a(f"v_cvt_pk_bf16_f32 {v(t)}, {v(S2a)}, {v(S2a)}"); a(f"v_and_b32 {v(S2a)}, {s(sMask)}, {v(t)}")
    a(f"v_rcp_f32 {v(res)}, {v(S2a)}"); a("s_nop 0")
    a(f"v_mul_f32 {v(res+1)}, -{v(S1a)}, {v(res)}") if False else a(f"v_mul_f32_e64 {v(res+1)}, -{v(S1a)}, {v(res)}")
    return o
def stats_block(role):
    ng = 1 if role == "A" else 2
    o = []; a = o.append
    res = vRaw
    for g in range(ng):
        o += stats_reduce_fin(vSt + 4 * g, vSt + 4 * g + 1, vSt + 4 * g + 2, vSt + 4 * g + 3, res + 2 * g)
    a(f"s_sub_u32 {s(t0)}, {s(sXm)}, {XOFF}"); a(f"s_lshr_b32 {s(t0)}, {s(t0)}, 4"); a(f"s_add_u32 {s(t0)}, {s(t0)}, {STATS}")
    a(f"v_bfe_u32 {v(T[0])}, {L_}, 2, 3"); a(f"v_lshlrev_b32 {v(T[0])}, 3, {v(T[0])}"); a(f"v_add_u32 {v(T[0])}, {s(t0)}, {v(T[0])}")
    a(f"s_mov_b64 exec, 0x11111111")
    for g in range(ng): a(f"ds_write_b64 {v(T[0])}, {v(res+2*g,2)} offset:{g*64}")
    a("s_mov_b64 exec, -1")
    return o
def extra_stats():
    o = []; a = o.append
    a(f"v_and_b32 {v(T[0])}, 3, {L_}"); a(f"v_lshrrev_b32 {v(T[1])}, 5, {L_}"); a(f"v_lshl_add_u32 {v(T[0])}, {v(T[1])}, 2, {v(T[0])}"); a(f"v_lshlrev_b32 {v(T[0])}, 3, {v(T[0])}")
    a(f"ds_read_b64 {v(vE,2)}, {v(T[0])} offset:{XP}") if XP < 65536 else None
    return o

def epilogue(role):
    nT = 4 if role == "A" else 3; T0 = 0 if role == "A" else 4
    o = []; a = o.append
    a(f"v_lshrrev_b32 {v(T[0])}, 4, {L_}"); a(f"v_and_b32 {v(T[1])}, 15, {L_}")
    a(f"s_lshl_b32 {s(t0)}, {s(sCg)}, 6"); a(f"s_add_u32 {s(t0)}, {s(t0)}, {ED}")
    a(f"v_lshlrev_b32 {v(T[2])}, 4, {v(T[0])}"); a(f"v_add_u32 {v(T[2])}, {s(t0)}, {v(T[2])}")
    if role == "B":
        a(f"v_mul_u32_u24 {v(T[3])}, 768, {v(T[1])}"); a(f"v_add_u32 {v(T[3])}, {v(T[3])}, {v(T[2])}"); a(f"v_subrev_u32 {v(T[3])}, 768, {v(T[3])}")
        a("s_nop 7")
        a("s_mov_b32 exec_lo, 0x00060006"); a("s_mov_b32 exec_hi, 0x00060006")
        for u in range(3): a(f"ds_write_b128 {v(T[3])}, {v(vAcc+(6+u)*4,4)} offset:{u*256}")
        a("s_mov_b64 exec, -1")
    a(f"v_lshlrev_b32 {v(T[3])}, 3, {v(T[1])}"); a(f"v_add_u32 {v(T[3])}, {STATS + T0*128}, {v(T[3])}")
    a(f"v_mul_u32_u24 {v(T[4])}, {RS}, {v(T[1])}"); a(f"v_lshl_add_u32 {v(T[4])}, {v(T[0])}, 3, {v(T[4])}")
    a(f"s_lshl_b32 {s(t0)}, {s(sCg)}, 5"); a(f"s_add_u32 {s(t0)}, {s(t0)}, {T0*16*RS}"); a(f"v_add_u32 {v(T[4])}, {s(t0)}, {v(T[4])}")
    a("s_waitcnt vmcnt(0) lgkmcnt(0)"); a("s_barrier")
    eR = vWF; dR = vWF + 12; sR = vXF
    for u in range(3):
        a(f"ds_read_b128 {v(eR+4*u,4)}, {v(T[2])} offset:{u*256}"); a(f"ds_read_b128 {v(dR+4*u,4)}, {v(T[2])} offset:{u*256+768}")
    for Tt in range(nT): a(f"ds_read_b64 {v(sR+2*Tt,2)}, {v(T[3])} offset:{Tt*128}")
    tm = vXF + 8
    k = 0
    for Tt in range(nT):
        for u in range(3):
            a_ = vAcc + (Tt * 3 + u) * 4
            x = tm + 4 * (k % 4); k += 1
            for hf in range(2):
                a(f"v_pk_fma_f32 {v(x+2*hf,2)}, {v(eR+4*u+2*hf,2)}, {v(sR+2*Tt,2)}, {v(dR+4*u+2*hf,2)} op_sel:[0,1,0] op_sel_hi:[1,1,1]")
                a(f"v_pk_fma_f32 {v(x+2*hf,2)}, {v(a_+2*hf,2)}, {v(sR+2*Tt,2)}, {v(x+2*hf,2)} op_sel:[0,0,0] op_sel_hi:[1,0,1]")
            a(f"v_cvt_pk_bf16_f32 {v(a_)}, {v(x)}, {v(x+1)}"); a(f"v_cvt_pk_bf16_f32 {v(a_+1)}, {v(x+2)}, {v(x+3)}")
            a(f"ds_write_b64 {v(T[4])}, {v(a_,2)} offset:{Tt*16*RS + u*128}")
    a("s_waitcnt lgkmcnt(0)"); a("s_barrier")
    a("s_branch L_store")
    return o

def role_code(role):
    n = 4 if role == "A" else 5
    o = []; a = o.append
    if role == "A":
        a(f"s_cmp_ge_u32 {s(sWave)}, 2"); a("s_cbranch_scc1 L_tab")
        a(f"s_mul_i32 {s(t0)}, {s(sWave)}, 576"); a(f"v_lshlrev_b32 {v(T[4])}, 4, {L_}"); a(f"v_add_u32 {v(T[4])}, {s(t0)}, {v(T[4])}")
        a(f"v_mov_b32 {v(T[5])}, 0x40000000"); a(f"v_cmp_gt_u32 vcc, 36, {L_}"); a("s_nop 1"); a(f"v_cndmask_b32 {v(T[4])}, {v(T[5])}, {v(T[4])}, vcc")
        a(f"s_add_u32 {s(t1)}, {s(sRb)}, 8160"); a(f"s_mul_i32 {s(t1)}, {s(t1)}, 1152")
        a(f"buffer_load_dwordx4 {v(vE+4,4)}, {v(T[4])}, {s(SG,4)}, 0 offen")
        a(f"buffer_load_dwordx4 {v(vE+8,4)}, {v(T[4])}, {s(SX,4)}, {s(t1)} offen")
        a(f"v_mov_b32 {v(vS)}, {v(T[4])}")
        a("s_branch L_tabdone")
        a("L_tab:")
        a(f"v_lshlrev_b32 {v(T[4])}, 4, {L_}")
        a(f"s_cmp_eq_u32 {s(sWave)}, 2"); a("s_cbranch_scc0 L_tabb")
        a(f"s_mov_b32 m0, {GBF}"); a("s_nop 0"); a(f"buffer_load_dwordx4 {v(T[4])}, {s(SG,4)}, 0 offen lds")
        a("s_mov_b64 exec, 0xff"); a(f"buffer_load_dwordx4 {v(T[4])}, {s(SG,4)}, 0 offen offset:1024 lds"); a("s_mov_b64 exec, -1")
        a("s_branch L_tabdone")
        a("L_tabb:")
        a(f"s_mov_b32 m0, {BBF}"); a("s_nop 0"); a(f"buffer_load_dwordx4 {v(T[4])}, {s(SB,4)}, 0 offen lds")
        a("s_mov_b64 exec, 0xff"); a(f"buffer_load_dwordx4 {v(T[4])}, {s(SB,4)}, 0 offen offset:1024 lds"); a("s_mov_b64 exec, -1")
        a("L_tabdone:")
    o += dma_chunk(role, cA, st0) + dma_chunk(role, cB, st1) + dma_chunk(role, cC, st2)
    o += common_addr(role)
    o += auto_lgkm(prep_block(role, n, first=True))
    if role == "A":
        a(f"s_cmp_ge_u32 {s(sWave)}, 2"); a("s_cbranch_scc1 L_noextra")
        Gt = vWF; St = vXF
        for d in range(4):
            a(f"v_lshlrev_b32 {v(Gt+2*d)}, 16, {v(vE+4+d)}"); a(f"v_and_b32 {v(Gt+2*d+1)}, {s(sMask)}, {v(vE+4+d)}")
        for i in range(4): a(f"v_mov_b32 {v(St+i)}, 0")
        a(f"v_lshlrev_b32 {v(T[4])}, 1, {v(vS)}"); a(f"v_add_u32 {v(T[4])}, {GF32}, {v(T[4])}"); a(f"v_add_u32 {v(T[5])}, {XE}, {v(vS)}")
        o += prep_valu(vE + 8, St, Gt)
        a("s_mov_b32 exec_lo, -1"); a("s_mov_b32 exec_hi, 0xf")
        a(f"ds_write_b128 {v(T[4])}, {v(Gt,4)}"); a(f"ds_write_b128 {v(T[4])}, {v(Gt+4,4)} offset:16"); a(f"ds_write_b128 {v(T[5])}, {v(vE+8,4)}")
        a("s_mov_b64 exec, -1")
        a(f"v_add_f32 {v(St)}, {v(St)}, {v(St+1)}"); a(f"v_add_f32 {v(St+1)}, {v(St+2)}, {v(St+3)}"); a("s_nop 1")
        for dp in ("quad_perm:[1,0,3,2]", "quad_perm:[2,3,0,1]", "row_half_mirror", "row_mirror"):
            a(f"v_add_f32_dpp {v(St)}, {v(St)}, {v(St)} {dp} row_mask:0xf bank_mask:0xf")
            a(f"v_add_f32_dpp {v(St+1)}, {v(St+1)}, {v(St+1)} {dp} row_mask:0xf bank_mask:0xf"); a("s_nop 1")
        a(f"v_lshrrev_b32 {v(T[4])}, 4, {L_}"); a(f"v_lshlrev_b32 {v(T[4])}, 3, {v(T[4])}"); a(f"s_lshl_b32 {s(t0)}, {s(sWave)}, 5"); a(f"s_add_u32 {s(t0)}, {s(t0)}, {XP}"); a(f"v_add_u32 {v(T[4])}, {s(t0)}, {v(T[4])}")
        a("s_mov_b32 exec_lo, 0x00010001"); a("s_mov_b32 exec_hi, 0x00010001")
        a(f"ds_write_b64 {v(T[4])}, {v(St,2)}")
        a("s_mov_b64 exec, -1")
        a("L_noextra:")
    a(f"s_mov_b32 {s(sI)}, 0")
    a(f"s_waitcnt vmcnt({2*n}) lgkmcnt(0)"); a("s_barrier")
    a(f"L_loop{role}:")
    body = []
    body.append(f"s_add_u32 {s(t2)}, {s(cA)}, 3"); body.append(f"s_cmp_ge_u32 {s(t2)}, 9"); body.append(f"s_cselect_b32 {s(t1)}, 9, 0"); body.append(f"s_sub_u32 {s(t2)}, {s(t2)}, {s(t1)}")
    body += dma_chunk(role, t2, st3, oob=True)
    mb = mfma_block(role); pb = prep_block(role, n)
    body += (mb + pb) if role == "A" else (pb + mb)
    body += [f"s_mov_b32 {s(cA)}, {s(cB)}", f"s_mov_b32 {s(cB)}, {s(cC)}", f"s_mov_b32 {s(cC)}, {s(t2)}",
             f"s_mov_b32 {s(t1)}, {s(st0)}", f"s_mov_b32 {s(st0)}, {s(st1)}", f"s_mov_b32 {s(st1)}, {s(st2)}", f"s_mov_b32 {s(st2)}, {s(st3)}", f"s_mov_b32 {s(st3)}, {s(t1)}",
             f"s_add_u32 {s(sI)}, {s(sI)}, 1", f"s_cmp_lt_u32 {s(sI)}, 8",
             f"s_waitcnt vmcnt({2*n}) lgkmcnt(0)", "s_barrier", f"s_cbranch_scc1 L_loop{role}"]
    o += auto_lgkm(body)
    fin = []
    sb = stats_block(role)
    if role == "A":
        fin += mfma_block(role) + sb
        fin.append(f"s_cmp_lg_u32 {s(sWave)}, 0"); fin.append("s_cbranch_scc1 L_noex2")
        x = []
        x.append(f"v_and_b32 {v(T[0])}, 3, {L_}"); x.append(f"v_lshrrev_b32 {v(T[1])}, 5, {L_}"); x.append(f"v_lshl_add_u32 {v(T[0])}, {v(T[1])}, 2, {v(T[0])}"); x.append(f"v_lshlrev_b32 {v(T[0])}, 3, {v(T[0])}")
        x.append(f"v_add_u32 {v(T[0])}, {XP}, {v(T[0])}")
        x.append(f"ds_read_b64 {v(vE,2)}, {v(T[0])}")
        x.append(f"v_mov_b32 {v(vE+2)}, 0"); x.append(f"v_mov_b32 {v(vE+3)}, 0"); x.append("s_waitcnt lgkmcnt(0)")
        x += stats_reduce_fin(vE, vE + 2, vE + 1, vE + 3, vE + 4)
        x.append(f"v_mov_b32 {v(T[0])}, {STATS + 96*8}"); x.append("s_mov_b64 exec, 1"); x.append(f"ds_write_b64 {v(T[0])}, {v(vE+4,2)}"); x.append("s_mov_b64 exec, -1")
        fin += x
        fin.append("L_noex2:")
    else:
        fin += sb + mfma_block(role)
    fin += epilogue(role)
    o += auto_lgkm(fin)
    return o
out += role_code("A")
A("L_roleB:")
out += role_code("B")
A("L_store:")
st = []
ont = " nt" if ONT else ""
for it in range(5): st.append(f"ds_read_b128 {v(vAcc+4*it,4)}, {v(vStL+it)}")
for it in range(5): st.append(f"buffer_store_dwordx4 {v(vAcc+4*it,4)}, {v(vStG+it)}, {s(SO,4)}, 0 offen{ont}")
out += auto_lgkm(st)
if STAMP:
    A("s_waitcnt vmcnt(0)"); A("s_barrier"); A("s_memrealtime s[66:67]"); A("s_waitcnt lgkmcnt(0)")
    A(f"s_cmp_lg_u32 {s(sWave)}, 0"); A("s_cbranch_scc1 L_end")
    A("v_mov_b32 v4, s64"); A("v_mov_b32 v5, s65"); A("v_mov_b32 v6, s66"); A("v_mov_b32 v7, s67")
    A("s_lshl_b32 s68, s2, 4"); A("v_mov_b32 v3, s68"); A("s_mov_b64 exec, 1")
    A(f"buffer_store_dwordx4 v[4:7], v3, {s(SD,4)}, 0 offen")
A("L_end:"); A("s_endpgm")
A('.section .rodata,"a"'); A(".p2align 6"); A(f".amdhsa_kernel {NAME}")
nv = (NV + 7) // 8 * 8
A(f"  .amdhsa_next_free_vgpr {nv}"); A("  .amdhsa_next_free_sgpr 72"); A(f"  .amdhsa_accum_offset {nv}")
A("  .amdhsa_group_segment_fixed_size 0"); A("  .amdhsa_kernarg_size 56"); A("  .amdhsa_user_sgpr_count 2")
A("  .amdhsa_user_sgpr_kernarg_segment_ptr 1"); A("  .amdhsa_system_sgpr_workgroup_id_x 1"); A(".end_amdhsa_kernel")
print("\n".join(x for x in out if x))
```

```python
import sys
from asmlib import *
opts = dict(a.split("=") for a in sys.argv[1:] if "=" in a)
XNT = opts.get("xnt", "1") == "1"
ROT = opts.get("rot", "1") == "1"
STAMP = opts.get("stamp", "0") == "1"
ONT = opts.get("ont", "0") == "1"
PROF = opts.get("prof", "0") == "1"
TC = int(opts.get("tc", "3"))
PPRIO = int(opts.get("pprio", "0"))
NWS = int(opts.get("nws", "3")); NXS = int(opts.get("nxs", "6"))
if PROF: STAMP = True
NAME = "standalone__layernorm_linear__sampling_kernel"
WS = 24576; XS = 12288; XB = NWS * WS
GF32 = XB + NXS * XS; XE = GF32 + 2304; GBF = XE + 1152; BBF = GBF + 1152; STATS = BBF + 1152; XP = STATS + 896
FL = XP + 64; RDY = FL; CONS = FL + 64; XL = FL + 128
LDSB = FL + 192
assert LDSB <= 163840
RS = 400
out = []
A = out.append; a = A
hdr = open("standalone__layernorm_linear__sampling.s.ref").read().split("; Override launch")[0]
A(hdr.rstrip())
A(f"; @launch grid=(256,1,1) block=(640,1,1) lds={LDSB}")
A('.amdgcn_target "amdgcn-amd-amdhsa--gfx950"')
A(".text"); A(f".globl {NAME}"); A(".p2align 8"); A(f".type {NAME},@function"); A(f"{NAME}:")
SX, SW, SG, SB, SO = 16, 20, 24, 28, 32
sWave, sRb, sCs, sCg = 36, 37, 38, 39
cA, cB, cC = 40, 41, 42
sI = 43
sWb, sXb = 44, 45
t0, t1, t2, t3 = 48, 49, 51, 52
sMask = 50
sSo = 58; sM = 59; sJ = 47; sF = 46
SD = 60
vLane = 1; vT = 2; T = [vT + i for i in range(8)]
vPr = 10
L_ = v(vLane)
def stamp(idx):
    if not PROF: return []
    if isinstance(idx, str): return ["s_memtime s[70:71]", f"s_mov_b32 m0, {idx}", "s_waitcnt lgkmcnt(0)", f"v_writelane_b32 {v(vPr)}, s70, m0"]
    return ["s_memtime s[70:71]", "s_waitcnt lgkmcnt(0)", f"v_writelane_b32 {v(vPr)}, s70, {idx}"]
def stamp_i(off):
    if not PROF: return []
    return [f"s_lshl_b32 s69, {s(sI)}, 1", f"s_add_u32 s69, s69, {off}"] + stamp("s69")

if STAMP: A("s_memrealtime s[64:65]")
A("s_cmp_ge_u32 s2, 255"); A("s_cbranch_scc1 L_end")
A("s_load_dwordx8 s[4:11], s[0:1], 0")
A("s_load_dwordx2 s[12:13], s[0:1], 32")
if STAMP: A("s_load_dwordx2 s[14:15], s[0:1], 48")
A(f"v_lshrrev_b32 {v(vT)}, 6, v0"); A(f"v_and_b32 {v(vLane)}, 63, v0")
A(f"s_and_b32 {s(t0)}, s2, 7"); A(f"s_lshl_b32 {s(t0)}, {s(t0)}, 5"); A(f"s_lshr_b32 {s(t1)}, s2, 3"); A(f"s_add_u32 {s(t0)}, {s(t0)}, {s(t1)}")
A(f"v_readfirstlane_b32 {s(sWave)}, {v(vT)}")
A(f"s_mul_i32 {s(sRb)}, {s(t0)}, 21846"); A(f"s_lshr_b32 {s(sRb)}, {s(sRb)}, 16")
A(f"s_mul_i32 {s(t1)}, {s(sRb)}, 3"); A(f"s_sub_u32 {s(sCs)}, {s(t0)}, {s(t1)}")
A(f"s_add_u32 {s(sCg)}, {s(sWave)}, 2"); A(f"s_and_b32 {s(sCg)}, {s(sCg)}, 3")
A(f"s_mov_b32 {s(sMask)}, 0xffff0000")
if ROT:
    A(f"s_mul_i32 {s(t0)}, {s(sRb)}, 21846"); A(f"s_lshr_b32 {s(t0)}, {s(t0)}, 16")
    A(f"s_mul_i32 {s(t1)}, {s(t0)}, 3"); A(f"s_sub_u32 {s(t1)}, {s(sRb)}, {s(t1)}")
    A(f"s_mul_i32 {s(t2)}, {s(t0)}, 21846"); A(f"s_lshr_b32 {s(t2)}, {s(t2)}, 16"); A(f"s_mul_i32 {s(t2)}, {s(t2)}, 3"); A(f"s_sub_u32 {s(t0)}, {s(t0)}, {s(t2)}")
    A(f"s_mul_i32 {s(t0)}, {s(t0)}, 3")
    A(f"s_add_u32 {s(t1)}, {s(t1)}, {s(sCs)}")
    for k, cr in enumerate((cA, cB, cC)):
        if k: A(f"s_add_u32 {s(t1)}, {s(t1)}, 1")
        A(f"s_cmp_ge_u32 {s(t1)}, 3"); A(f"s_cselect_b32 {s(t2)}, 3, 0"); A(f"s_sub_u32 {s(t1)}, {s(t1)}, {s(t2)}")
        A(f"s_add_u32 {s(cr)}, {s(t0)}, {s(t1)}")
else:
    A(f"s_mov_b32 {s(cA)}, 0"); A(f"s_mov_b32 {s(cB)}, 1"); A(f"s_mov_b32 {s(cC)}, 2")
def rot_c():
    return [f"s_add_u32 {s(t2)}, {s(cA)}, 3", f"s_cmp_ge_u32 {s(t2)}, 9", f"s_cselect_b32 {s(t1)}, 9, 0", f"s_sub_u32 {s(t2)}, {s(t2)}, {s(t1)}",
            f"s_mov_b32 {s(cA)}, {s(cB)}", f"s_mov_b32 {s(cB)}, {s(cC)}", f"s_mov_b32 {s(cC)}, {s(t2)}"]
def wrap(reg, inc, lim):
    return [f"s_add_u32 {s(reg)}, {s(reg)}, {inc}", f"s_cmp_ge_u32 {s(reg)}, {lim}", f"s_cselect_b32 {s(reg)}, 0, {s(reg)}"]
def srds(lst):
    o = ["s_waitcnt lgkmcnt(0)"] + stamp(0)
    for srd, p, nb in lst:
        o += [f"s_mov_b32 {s(srd)}, {s(p)}", f"s_mov_b32 {s(srd+1)}, {s(p+1)}", f"s_mov_b32 {s(srd+2)}, {nb}", f"s_mov_b32 {s(srd+3)}, 0x20000"]
    if STAMP: o += [f"s_mov_b32 {s(SD)}, s14", f"s_mov_b32 {s(SD+1)}, s15", f"s_mov_b32 {s(SD+2)}, 0x100000", f"s_mov_b32 {s(SD+3)}, 0x20000"]
    return o
def ipiece():
    return [f"v_lshrrev_b32 {v(T[0])}, 3, {L_}", f"v_and_b32 {v(T[0])}, 2, {v(T[0])}", f"v_and_b32 {v(T[1])}, 3, {L_}", f"v_xor_b32 {v(T[0])}, {v(T[0])}, {v(T[1])}",
            f"v_lshrrev_b32 {v(T[1])}, 5, {L_}", f"v_lshl_add_u32 {v(T[0])}, {v(T[1])}, 2, {v(T[0])}", f"v_bfe_u32 {v(T[1])}, {L_}, 2, 3", f"v_lshlrev_b32 {v(T[3])}, 4, {v(T[0])}"]
def signal(vaddr, vone, off):
    return ["s_mov_b64 exec, 1", f"ds_add_u32 {v(vaddr)}, {v(vone)} offset:{off}", "s_mov_b64 exec, -1"]
def poll(label, vaddr, vtmp, off, target, pre=False):
    o = []
    if pre:
        o += ["s_waitcnt lgkmcnt(0)", f"v_readfirstlane_b32 {s(sF)}, {v(vtmp)}", f"s_cmp_ge_u32 {s(sF)}, {target}", f"s_cbranch_scc1 {label}_ok"]
    o += [f"{label}:", f"ds_read_b32 {v(vtmp)}, {v(vaddr)} offset:{off}", "s_waitcnt lgkmcnt(0)", f"v_readfirstlane_b32 {s(sF)}, {v(vtmp)}",
          f"s_cmp_ge_u32 {s(sF)}, {target}", f"s_cbranch_scc0 {label}", f"{label}_ok:"]
    return o
dX, dG, dB, dW, dO = (SX, 4, 9437184), (SG, 6, 1152), (SB, 8, 1152), (SW, 10, 663552), (SO, 12, 9437184)
A(f"s_cmp_eq_u32 {s(sWave)}, 1"); A("s_cbranch_scc1 L_ldW")
A(f"s_cmp_ge_u32 {s(sWave)}, 6"); A("s_cbranch_scc1 L_prep")
A(f"s_cmp_ge_u32 {s(sWave)}, 2"); A("s_cbranch_scc1 L_mfma")
xnt = " nt" if XNT else ""
ont = " nt" if ONT else ""
OC = CONS - FL; OX = XL - FL

def store_addr(idx_expr):
    o = []; a = o.append
    a(f"s_mul_i32 {s(t0)}, {s(sRb)}, {96*1152}"); a(f"s_mul_i32 {s(t1)}, {s(sCs)}, 384"); a(f"s_add_u32 {s(t0)}, {s(t0)}, {s(t1)}")
    o += idx_expr
    a(f"s_mul_i32 {s(t3)}, {s(t2)}, {16*1152}"); a(f"s_add_u32 {s(t0)}, {s(t0)}, {s(t3)}"); a(f"s_mul_i32 {s(t3)}, {s(t2)}, {16*RS}")
    for n in range(3):
        a(f"v_add_u32 {v(T[4])}, {n*64}, {L_}")
        a(f"v_mul_u32_u24 {v(T[5])}, 2731, {v(T[4])}"); a(f"v_lshrrev_b32 {v(T[5])}, 16, {v(T[5])}")
        a(f"v_mul_u32_u24 {v(T[6])}, 24, {v(T[5])}"); a(f"v_sub_u32 {v(T[4])}, {v(T[4])}, {v(T[6])}"); a(f"v_lshlrev_b32 {v(T[4])}, 4, {v(T[4])}")
        a(f"v_mul_u32_u24 {v(T[6])}, {RS}, {v(T[5])}"); a(f"v_add3_u32 v{20+n}, {v(T[6])}, {v(T[4])}, {s(t3)}")
        a(f"v_mul_u32_u24 {v(T[6])}, 1152, {v(T[5])}"); a(f"v_add3_u32 v{23+n}, {v(T[6])}, {v(T[4])}, {s(t0)}")
    return o

vXd = 11; vFa = 17; vOne = 18; vFt = 19
out += ipiece()
a(f"s_mul_i32 {s(t0)}, {s(sRb)}, {96*1152}")
a(f"v_mul_u32_u24 {v(T[2])}, 1152, {v(T[1])}"); a(f"v_add3_u32 {v(vXd)}, {v(T[2])}, {v(T[3])}, {s(t0)}")
a(f"v_lshlrev_b32 {v(T[4])}, 4, {L_}")
a(f"v_mov_b32 {v(vFa)}, {FL - 4}"); a(f"v_mov_b32 {v(vOne)}, 1")
out += srds([dX, dG, dB, dO])
a(f"s_mov_b32 {s(sM)}, 0"); a(f"s_mov_b32 {s(sI)}, 0")
a("L_xloop:")
a(f"s_cmp_lt_u32 {s(sI)}, {NXS}"); a("s_cbranch_scc1 L_xfree_ok")
out += poll("L_xfree", vFa, vFt, OC - 4 * (NXS - 1), 4)
a(f"s_lshl_b32 {s(sSo)}, {s(cA)}, 7"); a(f"s_add_u32 m0, {s(sM)}, {XB}")
for G in range(12):
    if G: a(f"s_add_u32 m0, m0, 1024"); a(f"s_add_u32 {s(sSo)}, {s(sSo)}, 9216")
    else: a("s_nop 0")
    a(f"buffer_load_dwordx4 {v(vXd)}, {s(SX,4)}, {s(sSo)} offen{xnt} lds")
out += rot_c() + wrap(sM, XS, NXS * XS)
a(f"s_cmp_eq_u32 {s(sI)}, 0"); a("s_cbranch_scc0 L_xsig")
a(f"s_mov_b32 m0, {GBF}"); a("s_nop 0"); a(f"buffer_load_dwordx4 {v(T[4])}, {s(SG,4)}, 0 offen lds")
a("s_mov_b64 exec, 0xff"); a(f"buffer_load_dwordx4 {v(T[4])}, {s(SG,4)}, 0 offen offset:1024 lds"); a("s_mov_b64 exec, -1")
a(f"s_mov_b32 m0, {BBF}"); a("s_nop 0"); a(f"buffer_load_dwordx4 {v(T[4])}, {s(SB,4)}, 0 offen lds")
a("s_mov_b64 exec, 0xff"); a(f"buffer_load_dwordx4 {v(T[4])}, {s(SB,4)}, 0 offen offset:1024 lds"); a("s_mov_b64 exec, -1")
a("s_barrier")
a("s_branch L_xnext")
a("L_xsig:")
a("s_waitcnt vmcnt(12)")
out += signal(vFa, vOne, OX)
out += stamp_i(1)
a("L_xnext:")
a(f"v_add_u32 {v(vFa)}, 4, {v(vFa)}")
a(f"s_add_u32 {s(sI)}, {s(sI)}, 1"); a(f"s_cmp_lt_u32 {s(sI)}, 9"); a("s_cbranch_scc1 L_xloop")
a("s_waitcnt vmcnt(0)")
out += signal(vFa, vOne, OX)
out += stamp_i(1)
out += store_addr([f"s_mov_b32 {s(t2)}, 4"])
a("s_barrier")
a("s_branch L_store")
a("L_ldW:")
vWd = 11
a(f"s_mul_i32 {s(t0)}, {s(sCs)}, 384")
for n in range(6):
    a(f"v_add_u32 {v(T[4])}, {n*64}, {L_}")
    a(f"v_mul_u32_u24 {v(T[5])}, 2731, {v(T[4])}"); a(f"v_lshrrev_b32 {v(T[5])}, 16, {v(T[5])}")
    a(f"v_mul_u32_u24 {v(T[6])}, 24, {v(T[5])}"); a(f"v_sub_u32 {v(T[4])}, {v(T[4])}, {v(T[6])}")
    a(f"v_and_b32 {v(T[6])}, 2, {v(T[5])}")
    a(f"v_lshrrev_b32 {v(T[7])}, 1, {v(T[5])}"); a(f"v_and_b32 {v(T[7])}, 4, {v(T[7])}")
    a(f"v_or_b32 {v(T[6])}, {v(T[6])}, {v(T[7])}"); a(f"v_xor_b32 {v(T[4])}, {v(T[4])}, {v(T[6])}")
    a(f"v_mul_u32_u24 {v(T[5])}, 1152, {v(T[5])}"); a(f"v_lshl_add_u32 {v(T[4])}, {v(T[4])}, 4, {v(T[5])}"); a(f"v_add_u32 {v(vWd+n)}, {s(t0)}, {v(T[4])}")
a(f"v_mov_b32 {v(vFa)}, {FL - 4}"); a(f"v_mov_b32 {v(vOne)}, 1")
out += srds([dW, dO])
a(f"s_mov_b32 {s(sM)}, 0"); a(f"s_mov_b32 {s(sI)}, 0")
a("L_wloop:")
a(f"s_cmp_lt_u32 {s(sI)}, {NWS}"); a("s_cbranch_scc1 L_wfree_ok")
out += poll("L_wfree", vFa, vFt, OC - 4 * (NWS - 1), 4)
a(f"s_mul_i32 {s(sSo)}, {s(cA)}, 73728"); a(f"s_mov_b32 m0, {s(sM)}"); a(f"s_mov_b32 {s(sJ)}, 0")
a("L_winner:")
for n in range(6):
    a(f"buffer_load_dwordx4 {v(vWd+n)}, {s(SW,4)}, {s(sSo)} offen lds")
    a("s_add_u32 m0, m0, 1024")
    if n < 5: a("s_nop 0")
a(f"s_add_u32 {s(sSo)}, {s(sSo)}, {16*1152}"); a(f"s_add_u32 {s(sJ)}, {s(sJ)}, 1")
a(f"s_cmp_eq_u32 {s(sJ)}, 2"); a("s_cbranch_scc0 L_wcont")
a(f"s_cmp_eq_u32 {s(sI)}, 0"); a("s_cbranch_scc1 L_wcont")
a("s_waitcnt vmcnt(12)")
out += signal(vFa, vOne, 0)
if PROF: a("s_mov_b32 s68, m0")
out += stamp_i(1)
if PROF: a("s_mov_b32 m0, s68")
a("L_wcont:")
a(f"s_cmp_lt_u32 {s(sJ)}, 4"); a("s_cbranch_scc1 L_winner")
out += rot_c() + wrap(sM, WS, NWS * WS)
a(f"s_cmp_eq_u32 {s(sI)}, 0"); a("s_cbranch_scc0 L_wnext")
a("s_barrier")
a("L_wnext:")
a(f"v_add_u32 {v(vFa)}, 4, {v(vFa)}")
a(f"s_add_u32 {s(sI)}, {s(sI)}, 1"); a(f"s_cmp_lt_u32 {s(sI)}, 9"); a("s_cbranch_scc1 L_wloop")
a("s_waitcnt vmcnt(0)")
out += signal(vFa, vOne, 0)
out += stamp_i(1)
out += store_addr([f"s_mov_b32 {s(t2)}, 5"])
a("s_barrier")
a("s_branch L_store")

def prep_valu(raw, st, G, tm):
    o = []
    for d in range(4):
        lo, hi = tm + 2 * (d % 4), tm + 2 * (d % 4) + 1
        o.append(f"v_lshlrev_b32 {v(lo)}, 16, {v(raw+d)}"); o.append(f"v_and_b32 {v(hi)}, {s(sMask)}, {v(raw+d)}")
        o.append(f"v_add_f32 {v(st)}, {v(st)}, {v(lo)}"); o.append(f"v_add_f32 {v(st+1)}, {v(st+1)}, {v(hi)}")
        o.append(f"v_fmac_f32 {v(st+2)}, {v(lo)}, {v(lo)}"); o.append(f"v_fmac_f32 {v(st+3)}, {v(hi)}, {v(hi)}")
        o.append(f"v_mul_f32 {v(lo)}, {v(lo)}, {v(G+2*d)}"); o.append(f"v_mul_f32 {v(hi)}, {v(hi)}, {v(G+2*d+1)}")
        o.append(f"v_cvt_pk_bf16_f32 {v(raw+d)}, {v(lo)}, {v(hi)}")
    return o

a("L_mfma:")
vWrB, vWr, vXrB, vXr, vSB, vS = 11, 12, 13, 14, 15, 16
vAcc = 20; vWF = 104; vXF = 128; NV = 156
vE = vAcc
a(f"s_cmp_eq_u32 {s(sCg)}, 3"); a("s_cbranch_scc0 L_m0")
a(f"v_lshrrev_b32 {v(T[0])}, 4, {L_}"); a(f"v_and_b32 {v(T[1])}, 15, {L_}")
a(f"v_mov_b32 {v(T[2])}, 0"); a(f"v_cmp_eq_u32 vcc, 0, {v(T[0])}"); a("s_nop 1"); a(f"v_cndmask_b32 {v(T[2])}, {v(T[2])}, 2, vcc") if False else None
a(f"v_mov_b32 {v(T[3])}, 2"); a(f"v_cndmask_b32 {v(T[2])}, {v(T[2])}, {v(T[3])}, vcc")
a(f"v_cmp_eq_u32 vcc, 2, {v(T[0])}"); a("s_nop 1"); a(f"v_cndmask_b32 {v(T[2])}, {v(T[2])}, {v(T[3])}, vcc")
a(f"v_mov_b32 {v(T[3])}, 0"); a(f"v_cmp_eq_u32 vcc, 0, {v(T[1])}"); a("s_nop 1"); a(f"v_cndmask_b32 {v(T[2])}, {v(T[2])}, {v(T[3])}, vcc")
a(f"v_lshlrev_b32 {v(T[3])}, 2, {L_}"); a(f"v_add_u32 {v(T[3])}, {FL}, {v(T[3])}")
a("s_mov_b32 exec_hi, 0xffff"); a(f"ds_write_b32 {v(T[3])}, {v(T[2])}"); a("s_mov_b64 exec, -1")
a("L_m0:")
out += srds([dX, dG])
a(f"s_cmp_ge_u32 {s(sCg)}, 2"); a("s_cbranch_scc1 L_m1")
a(f"s_mul_i32 {s(t0)}, {s(sCg)}, 576"); a(f"v_lshlrev_b32 {v(T[4])}, 4, {L_}"); a(f"v_add_u32 {v(T[4])}, {s(t0)}, {v(T[4])}")
a(f"v_mov_b32 {v(T[5])}, 0x40000000"); a(f"v_cmp_gt_u32 vcc, 36, {L_}"); a("s_nop 1"); a(f"v_cndmask_b32 {v(vE+28)}, {v(T[5])}, {v(T[4])}, vcc")
a(f"s_add_u32 {s(t1)}, {s(sRb)}, 8160"); a(f"s_mul_i32 {s(t1)}, {s(t1)}, 1152")
a(f"buffer_load_dwordx4 {v(vE,4)}, {v(vE+28)}, {s(SG,4)}, 0 offen")
a(f"buffer_load_dwordx4 {v(vE+4,4)}, {v(vE+28)}, {s(SX,4)}, {s(t1)} offen")
a("L_m1:")
a("s_barrier")
a(f"v_lshrrev_b32 {v(T[0])}, 4, {L_}"); a(f"v_bfe_u32 {v(T[1])}, {L_}, 2, 2")
a(f"v_lshl_add_u32 {v(T[2])}, {v(T[0])}, 3, {v(T[1])}"); a(f"v_mul_u32_u24 {v(T[2])}, 384, {v(T[2])}")
a(f"v_and_b32 {v(T[4])}, 2, {v(T[1])}"); a(f"v_and_b32 {v(T[5])}, 1, {v(T[0])}"); a(f"v_lshl_or_b32 {v(T[4])}, {v(T[5])}, 2, {v(T[4])}")
a(f"v_bfe_u32 {v(T[5])}, {L_}, 1, 1"); a(f"s_lshl_b32 {s(t0)}, {s(sCg)}, 1"); a(f"v_add_u32 {v(T[5])}, {s(t0)}, {v(T[5])}"); a(f"v_xor_b32 {v(T[4])}, {v(T[4])}, {v(T[5])}")
a(f"v_lshl_add_u32 {v(T[2])}, {v(T[4])}, 4, {v(T[2])}"); a(f"v_and_b32 {v(T[5])}, 1, {L_}"); a(f"v_lshl_add_u32 {v(vWrB)}, {v(T[5])}, 3, {v(T[2])}")
a(f"v_and_b32 {v(T[1])}, 7, {L_}"); a(f"v_lshrrev_b32 {v(T[2])}, 1, {v(T[1])}"); a(f"v_and_b32 {v(T[2])}, 2, {v(T[2])}"); a(f"v_xor_b32 {v(T[2])}, {v(T[2])}, {v(T[0])}")
a(f"v_lshl_add_u32 {v(T[2])}, {v(T[1])}, 2, {v(T[2])}"); a(f"v_lshlrev_b32 {v(T[2])}, 4, {v(T[2])}")
a(f"v_bfe_u32 {v(T[4])}, {L_}, 3, 1"); a(f"v_lshl_add_u32 {v(T[2])}, {v(T[4])}, 10, {v(T[2])}")
a(f"v_add_u32 {v(vXrB)}, {XB}, {v(T[2])}")
a(f"v_and_b32 {v(T[1])}, 15, {L_}"); a(f"v_min_u32 {v(T[2])}, 2, {v(T[1])}"); a(f"v_mul_u32_u24 {v(T[2])}, 1152, {v(T[2])}")
a(f"v_lshl_add_u32 {v(T[2])}, {v(T[0])}, 4, {v(T[2])}"); a(f"v_add_u32 {v(vSB)}, {XE}, {v(T[2])}")
a(f"v_lshlrev_b32 {v(T[6])}, 3, {v(T[1])}"); a(f"v_add_u32 {v(T[6])}, {STATS}, {v(T[6])}")
a(f"v_mul_u32_u24 {v(T[7])}, {RS}, {v(T[1])}"); a(f"v_lshl_add_u32 {v(T[7])}, {v(T[0])}, 3, {v(T[7])}")
a(f"s_lshl_b32 {s(t0)}, {s(sCg)}, 5"); a(f"v_add_u32 {v(T[7])}, {s(t0)}, {v(T[7])}")
a(f"v_mov_b32 {v(vFa)}, {FL}"); a(f"v_mov_b32 {v(vOne)}, 1")
a(f"s_cmp_ge_u32 {s(sCg)}, 2"); a("s_cbranch_scc1 L_m3")
Gt = vE + 8; St = vE + 16; tm = vE + 20
for i in range(4): a(f"v_mov_b32 {v(St+i)}, 0")
a(f"v_lshlrev_b32 {v(T[4])}, 1, {v(vE+28)}"); a(f"v_add_u32 {v(T[4])}, {GF32}, {v(T[4])}"); a(f"v_add_u32 {v(T[5])}, {XE}, {v(vE+28)}")
a("s_waitcnt vmcnt(1)")
for d in range(4):
    a(f"v_lshlrev_b32 {v(Gt+2*d)}, 16, {v(vE+d)}"); a(f"v_and_b32 {v(Gt+2*d+1)}, {s(sMask)}, {v(vE+d)}")
a("s_mov_b32 exec_lo, -1"); a("s_mov_b32 exec_hi, 0xf")
a(f"ds_write_b128 {v(T[4])}, {v(Gt,4)}"); a(f"ds_write_b128 {v(T[4])}, {v(Gt+4,4)} offset:16")
out += signal(vFa, vOne, OX)
a("s_waitcnt vmcnt(0)")
out += prep_valu(vE + 4, St, Gt, tm)
a("s_mov_b32 exec_lo, -1"); a("s_mov_b32 exec_hi, 0xf")
a(f"ds_write_b128 {v(T[5])}, {v(vE+4,4)}")
out += signal(vFa, vOne, 0)
a(f"v_add_f32 {v(St)}, {v(St)}, {v(St+1)}"); a(f"v_add_f32 {v(St+1)}, {v(St+2)}, {v(St+3)}"); a("s_nop 1")
for dp in ("quad_perm:[1,0,3,2]", "quad_perm:[2,3,0,1]", "row_half_mirror", "row_mirror"):
    a(f"v_add_f32_dpp {v(St)}, {v(St)}, {v(St)} {dp} row_mask:0xf bank_mask:0xf")
    a(f"v_add_f32_dpp {v(St+1)}, {v(St+1)}, {v(St+1)} {dp} row_mask:0xf bank_mask:0xf"); a("s_nop 1")
a(f"v_lshlrev_b32 {v(T[4])}, 3, {v(T[0])}"); a(f"s_lshl_b32 {s(t0)}, {s(sCg)}, 5"); a(f"s_add_u32 {s(t0)}, {s(t0)}, {XP}"); a(f"v_add_u32 {v(T[4])}, {s(t0)}, {v(T[4])}")
a(f"ds_write_b64 {v(T[4])}, {v(St,2)}")
a("s_waitcnt lgkmcnt(0)")
a("L_m3:")
for i in range(84): a(f"v_mov_b32 {v(vAcc+i)}, 0")
for i in range(12): a(f"v_mov_b32 {v(vWF+12+i)}, 0")
for i in range(4 * TC, 28): a(f"v_mov_b32 {v(vXF+i)}, 0")
a(f"s_mov_b32 {s(sWb)}, 0"); a(f"s_mov_b32 {s(sXb)}, 0"); a(f"s_mov_b32 {s(sI)}, 0")
a(f"v_mov_b32 {v(vFt)}, 0")
out += stamp(1)
ORD = [6, 0, 1, 2, 3, 4, 5]
def wreads(hh):
    wf = vWF + 12 * hh
    return [[f"ds_read_b64_tr_b16 {v(wf+4*u,2)}, {v(vWr)} offset:{u*128 + hh*12288}", f"ds_read_b64_tr_b16 {v(wf+4*u+2,2)}, {v(vWr)} offset:{u*128 + hh*12288 + 1536}"] for u in range(3)]
def xread(hh, pos):
    Tt = ORD[pos]
    if Tt == 6: return f"ds_read_b128 {v(vXF+4*pos,4)}, {v(vS)} offset:{hh*64}"
    return f"ds_read_b128 {v(vXF+4*pos,4)}, {v(vXr)} offset:{Tt*2048 + hh*512}"
def mf(hh, pos):
    Tt = ORD[pos]; wf = vWF + 12 * hh
    return [f"v_mfma_f32_16x16x32_bf16 {v(vAcc+(Tt*3+u)*4,4)}, {v(wf+4*u,4)}, {v(vXF+4*pos,4)}, {v(vAcc+(Tt*3+u)*4,4)}" for u in range(3)]
def mfma_iter(salu):
    o = []
    W0 = wreads(0); W1 = wreads(1)
    pend = W0[0] + [xread(0, 0)] + W0[1] + W0[2] + [xread(0, p) for p in range(1, TC)]
    for pos in range(TC, 7):
        for x in mf(1, pos):
            o.append(x); o += pend[:3]; pend = pend[3:]
        pend.append(xread(0, pos))
    pend += [x for p in W1 for x in p]
    sl = list(salu)
    for pos in range(7):
        for x in mf(0, pos):
            o.append(x); o += pend[:1]; pend = pend[1:]; o += sl[:1]; sl = sl[1:]
        pend.append(xread(1, pos))
    pend += signal(vFa, vOne, OC) + [f"ds_read_b32 {v(vFt)}, {v(vFa)} offset:4", f"v_add_u32 {v(vFa)}, 4, {v(vFa)}"]
    tail = [f"v_add_u32 {v(vWr)}, {s(sWb)}, {v(vWrB)}", f"s_lshl_b32 {s(t0)}, {s(cA)}, 7", f"v_add_u32 {v(vS)}, {s(t0)}, {v(vSB)}", f"v_add_u32 {v(vXr)}, {s(sXb)}, {v(vXrB)}"]
    first = True
    for pos in range(TC):
        for x in mf(1, pos):
            o.append(x)
            if first: o += pend; pend = []; first = False
            else: o += tail[:1]; tail = tail[1:]
    o += sl + tail
    return o
a(f"v_add_u32 {v(vWr)}, {s(sWb)}, {v(vWrB)}"); a(f"s_lshl_b32 {s(t0)}, {s(cA)}, 7"); a(f"v_add_u32 {v(vS)}, {s(t0)}, {v(vSB)}"); a(f"v_add_u32 {v(vXr)}, {s(sXb)}, {v(vXrB)}")
a("L_mloop:")
out += stamp_i(2)
out += poll("L_mrdy", vFa, vFt, 0, 7, pre=True)
out += stamp_i(3)
salu = rot_c() + wrap(sWb, WS, NWS * WS) + wrap(sXb, XS, NXS * XS) + [f"s_add_u32 {s(sI)}, {s(sI)}, 1"]
body = mfma_iter(salu) + [f"s_cmp_lt_u32 {s(sI)}, 9", "s_cbranch_scc1 L_mloop"]
out += auto_lgkm(body)
fin = []; f = fin.append
f("s_waitcnt lgkmcnt(0)")
fin += stamp(20)
f("s_barrier")
fin += stamp(21)
sRl = [2, 4, 6, 12, 14, 16, 18]
for Tt in range(7): f(f"ds_read_b64 {v(sRl[Tt],2)}, {v(T[6])} offset:{Tt*128}")
for pos in range(TC, 7): fin += mf(1, pos)
eR = vWF; dR = vXF
for u in range(3):
    for j in range(4):
        f(f"v_mov_b32_dpp {v(eR+4*u+j)}, {v(vAcc+(18+u)*4+j)} row_newbcast:1 row_mask:0xf bank_mask:0xf")
        f(f"v_mov_b32_dpp {v(dR+4*u+j)}, {v(vAcc+(18+u)*4+j)} row_newbcast:2 row_mask:0xf bank_mask:0xf")
tmA = vXF + 12; tmB = vWF + 12
for k, Tt in enumerate(ORD):
    tm_ = tmA if k % 2 == 0 else tmB
    xs = [tm_ + 4 * u for u in range(3)]; sR = sRl[Tt]
    for u in range(3):
        for hf in range(2):
            f(f"v_pk_fma_f32 {v(xs[u]+2*hf,2)}, {v(eR+4*u+2*hf,2)}, {v(sR,2)}, {v(dR+4*u+2*hf,2)} op_sel:[0,1,0] op_sel_hi:[1,1,1]")
    for u in range(3):
        a_ = vAcc + (Tt * 3 + u) * 4
        for hf in range(2):
            f(f"v_pk_fma_f32 {v(xs[u]+2*hf,2)}, {v(a_+2*hf,2)}, {v(sR,2)}, {v(xs[u]+2*hf,2)} op_sel:[0,0,0] op_sel_hi:[1,0,1]")
    for u in range(3):
        a_ = vAcc + (Tt * 3 + u) * 4
        f(f"v_cvt_pk_bf16_f32 {v(a_)}, {v(xs[u])}, {v(xs[u]+1)}"); f(f"v_cvt_pk_bf16_f32 {v(a_+1)}, {v(xs[u]+2)}, {v(xs[u]+3)}")
    for u in range(3):
        a_ = vAcc + (Tt * 3 + u) * 4
        f(f"ds_write_b64 {v(T[7])}, {v(a_,2)} offset:{Tt*16*RS + u*128}")
fin += stamp(22)
f("s_waitcnt lgkmcnt(0)"); f("s_barrier")
fin += stamp(23)
f("s_branch L_fin")
out += auto_lgkm(fin)

a("L_prep:")
if PPRIO: a(f"s_setprio {PPRIO}")
R = Regs(26)
vPB = R.alloc("pb"); vP = R.alloc("p"); vGB = R.alloc("gb"); vG = R.alloc("g")
vSt = R.alloc("stats", 16); vGq = R.alloc("gq", 8, 4); vRaw = R.alloc("raw", 12, 4); vTm = R.alloc("tmp", 8, 2); vRes = R.alloc("res", 8, 2)
a("s_barrier")
out += ipiece()
a(f"v_lshlrev_b32 {v(vGB)}, 5, {v(T[0])}"); a(f"v_add_u32 {v(vGB)}, {GF32}, {v(vGB)}")
a(f"s_mul_i32 {s(t0)}, {s(sCg)}, 3072"); a(f"s_add_u32 {s(t0)}, {s(t0)}, {XB}"); a(f"v_lshlrev_b32 {v(T[2])}, 4, {L_}"); a(f"v_add_u32 {v(vPB)}, {s(t0)}, {v(T[2])}")
for i in range(16): a(f"v_mov_b32 {v(vSt+i)}, 0")
out += srds([dO])
out += store_addr([f"s_mov_b32 {s(t2)}, {s(sCg)}"])
a(f"v_mov_b32 {v(vFa)}, {FL}"); a(f"v_mov_b32 {v(vOne)}, 1"); a(f"v_mov_b32 {v(vFt)}, 0")
a(f"s_mov_b32 {s(sXb)}, 0"); a(f"s_mov_b32 {s(sI)}, 0")
out += stamp(1)
a("L_ploop:")
a(f"v_add_u32 {v(vP)}, {s(sXb)}, {v(vPB)}"); a(f"s_lshl_b32 {s(t0)}, {s(cA)}, 8"); a(f"v_add_u32 {v(vG)}, {s(t0)}, {v(vGB)}")
out += stamp_i(2)
out += poll("L_px", vFa, vFt, OX, 3, pre=True)
out += stamp_i(3)
body = [f"ds_read_b128 {v(vRaw,4)}, {v(vP)}", f"ds_read_b128 {v(vGq,4)}, {v(vG)}", f"ds_read_b128 {v(vGq+4,4)}, {v(vG)} offset:16",
        f"ds_read_b128 {v(vRaw+4,4)}, {v(vP)} offset:1024", f"ds_read_b128 {v(vRaw+8,4)}, {v(vP)} offset:2048"]
body += rot_c() + wrap(sXb, XS, NXS * XS) + [f"s_add_u32 {s(sI)}, {s(sI)}, 1"]
for g in range(3):
    body += prep_valu(vRaw + 4 * g, vSt + 4 * g, vGq, vTm)
    body.append(f"ds_write_b128 {v(vP)}, {v(vRaw+4*g,4)} offset:{g*1024}")
    if g == 1: body.append(f"ds_read_b32 {v(vFt)}, {v(vFa)} offset:{OX+4}")
body += signal(vFa, vOne, 0) + [f"v_add_u32 {v(vFa)}, 4, {v(vFa)}", f"s_cmp_lt_u32 {s(sI)}, 9", "s_cbranch_scc1 L_ploop"]
out += auto_lgkm(body)
def stats_multi(sets, res):
    o = []; a = o.append
    def each(fn):
        for k, st_ in enumerate(sets): fn(k, *st_)
    each(lambda k, p, q, r, w: (a(f"v_add_f32 {v(p)}, {v(p)}, {v(q)}"), a(f"v_add_f32 {v(r)}, {v(r)}, {v(w)}")))
    for qp in ("[1,0,3,2]", "[2,3,0,1]"):
        each(lambda k, p, q, r, w: (a(f"v_add_f32_dpp {v(p)}, {v(p)}, {v(p)} quad_perm:{qp} row_mask:0xf bank_mask:0xf"), a(f"v_add_f32_dpp {v(r)}, {v(r)}, {v(r)} quad_perm:{qp} row_mask:0xf bank_mask:0xf")))
    each(lambda k, p, q, r, w: (a(f"v_mov_b32 {v(q)}, {v(p)}"), a(f"v_mov_b32 {v(w)}, {v(r)}")))
    each(lambda k, p, q, r, w: (a(f"v_permlane32_swap_b32 {v(p)}, {v(q)}"), a(f"v_permlane32_swap_b32 {v(r)}, {v(w)}")))
    each(lambda k, p, q, r, w: (a(f"v_add_f32 {v(p)}, {v(p)}, {v(q)}"), a(f"v_add_f32 {v(r)}, {v(r)}, {v(w)}")))
    each(lambda k, p, q, r, w: (a(f"v_mul_f32 {v(p)}, 0x3ae38e39, {v(p)}"), a(f"v_mul_f32 {v(r)}, 0x3ae38e39, {v(r)}")))
    each(lambda k, p, q, r, w: a(f"v_fma_f32 {v(r)}, -{v(p)}, {v(p)}, {v(r)}"))
    each(lambda k, p, q, r, w: a(f"v_max_f32 {v(r)}, 0, {v(r)}"))
    each(lambda k, p, q, r, w: a(f"v_cvt_pk_bf16_f32 {v(q)}, {v(p)}, {v(r)}"))
    each(lambda k, p, q, r, w: (a(f"v_and_b32 {v(r)}, {s(sMask)}, {v(q)}"), a(f"v_lshlrev_b32 {v(p)}, 16, {v(q)}")))
    each(lambda k, p, q, r, w: a(f"v_add_f32 {v(r)}, 0x3727c5ac, {v(r)}"))
    each(lambda k, p, q, r, w: a(f"v_cvt_pk_bf16_f32 {v(q)}, {v(r)}, {v(r)}"))
    each(lambda k, p, q, r, w: a(f"v_and_b32 {v(r)}, {s(sMask)}, {v(q)}"))
    each(lambda k, p, q, r, w: a(f"v_sqrt_f32 {v(r)}, {v(r)}"))
    each(lambda k, p, q, r, w: a(f"v_cvt_pk_bf16_f32 {v(q)}, {v(r)}, {v(r)}"))
    each(lambda k, p, q, r, w: a(f"v_and_b32 {v(r)}, {s(sMask)}, {v(q)}"))
    each(lambda k, p, q, r, w: a(f"v_rcp_f32 {v(res+2*k)}, {v(r)}"))
    each(lambda k, p, q, r, w: a(f"v_mul_f32_e64 {v(res+2*k+1)}, -{v(p)}, {v(res+2*k)}"))
    return o
a(f"v_and_b32 {v(T[0])}, 3, {L_}"); a(f"v_lshrrev_b32 {v(T[1])}, 5, {L_}"); a(f"v_lshl_add_u32 {v(T[0])}, {v(T[1])}, 2, {v(T[0])}"); a(f"v_lshlrev_b32 {v(T[0])}, 3, {v(T[0])}")
a(f"v_add_u32 {v(T[0])}, {XP}, {v(T[0])}")
a(f"ds_read_b64 {v(vGq,2)}, {v(T[0])}")
a(f"s_mul_i32 {s(t0)}, {s(sCg)}, 192"); a(f"s_add_u32 {s(t0)}, {s(t0)}, {STATS}")
a(f"v_bfe_u32 {v(T[0])}, {L_}, 2, 3"); a(f"v_lshlrev_b32 {v(T[0])}, 3, {v(T[0])}"); a(f"v_add_u32 {v(T[0])}, {s(t0)}, {v(T[0])}"); a(f"v_mov_b32 {v(T[1])}, {STATS + 96*8}")
a("s_waitcnt lgkmcnt(0)")
out += stats_multi([(vSt + 4 * g, vSt + 4 * g + 1, vSt + 4 * g + 2, vSt + 4 * g + 3) for g in range(3)] + [(vGq, vSt + 13, vGq + 1, vSt + 15)], vRes)
for g in range(3): a(f"ds_write_b64 {v(T[0])}, {v(vRes+2*g,2)} offset:{g*64}")
a(f"ds_write_b64 {v(T[1])}, {v(vRes+6,2)}")
a("s_waitcnt lgkmcnt(0)")
out += stamp(20)
a("s_barrier")
a("L_store:")
a(f"v_lshlrev_b32 {v(T[4])}, 4, {L_}"); a(f"v_add_u32 {v(T[6])}, {96*RS}, {v(T[4])}")
a(f"s_add_u32 {s(t2)}, {s(sRb)}, 8160"); a(f"s_mul_i32 {s(t2)}, {s(t2)}, 1152"); a(f"s_mul_i32 {s(t1)}, {s(sCs)}, 384"); a(f"s_add_u32 {s(t2)}, {s(t2)}, {s(t1)}")
a(f"v_add_u32 {v(T[4])}, {s(t2)}, {v(T[4])}"); a(f"v_mov_b32 {v(T[5])}, 0x40000000"); a(f"v_cmp_gt_u32 vcc, 24, {L_}"); a("s_nop 1"); a(f"v_cndmask_b32 {v(T[7])}, {v(T[5])}, {v(T[4])}, vcc")
a(f"s_mov_b32 {s(sSo)}, 9216")
a("s_barrier")
out += stamp(23)
st = []
for k in range(6): st.append(f"ds_read_b128 {v(32+4*k,4)}, v{20+k%3} offset:{(k//3)*8*RS}")
st.append(f"ds_read_b128 {v(56,4)}, {v(T[6])}")
for k in range(6): st.append(f"buffer_store_dwordx4 {v(32+4*k,4)}, v{23+k%3}, {s(SO,4)}, {s(sSo) if k >= 3 else 0} offen{ont}")
st.append(f"s_cmp_eq_u32 {s(sWave)}, 1"); st.append("s_cbranch_scc0 L_fin")
st.append(f"buffer_store_dwordx4 {v(56,4)}, {v(T[7])}, {s(SO,4)}, 0 offen{ont}")
out += auto_lgkm(st)
a("L_fin:")
if PROF:
    out.extend(stamp(24)); A("s_waitcnt vmcnt(0)"); out.extend(stamp(25))
    A(f"s_mul_i32 s68, s2, 10"); A(f"s_add_u32 s68, s68, {s(sWave)}"); A("s_lshl_b32 s68, s68, 8"); A("s_add_u32 s68, s68, 0x10000")
    A(f"v_lshlrev_b32 v3, 2, {L_}"); A(f"buffer_store_dword {v(vPr)}, v3, {s(SD,4)}, s68 offen")
if STAMP:
    A("s_waitcnt vmcnt(0)"); A("s_barrier"); A("s_memrealtime s[66:67]"); A("s_waitcnt lgkmcnt(0)")
    A(f"s_cmp_lg_u32 {s(sWave)}, 0"); A("s_cbranch_scc1 L_end")
    A("v_mov_b32 v4, s64"); A("v_mov_b32 v5, s65"); A("v_mov_b32 v6, s66"); A("v_mov_b32 v7, s67")
    A("s_lshl_b32 s68, s2, 4"); A("v_mov_b32 v3, s68"); A("s_mov_b64 exec, 1")
    A(f"buffer_store_dwordx4 v[4:7], v3, {s(SD,4)}, 0 offen")
A("L_end:"); A("s_endpgm")
A('.section .rodata,"a"'); A(".p2align 6"); A(f".amdhsa_kernel {NAME}")
nv = (NV + 7) // 8 * 8
A(f"  .amdhsa_next_free_vgpr {nv}"); A("  .amdhsa_next_free_sgpr 72"); A(f"  .amdhsa_accum_offset {nv}")
A("  .amdhsa_group_segment_fixed_size 0"); A("  .amdhsa_kernarg_size 56"); A("  .amdhsa_user_sgpr_count 2")
A("  .amdhsa_user_sgpr_kernarg_segment_ptr 1"); A("  .amdhsa_system_sgpr_workgroup_id_x 1"); A(".end_amdhsa_kernel")
print("\n".join(x for x in out if x))
```

```python
import sys
from asmlib import *
opts = dict(a.split("=") for a in sys.argv[1:] if "=" in a)
XNT = opts.get("xnt", "1") == "1"
ROT = opts.get("rot", "1") == "1"
STAMP = opts.get("stamp", "0") == "1"
ONT = opts.get("ont", "0") == "1"
PROF = opts.get("prof", "0") in ("1", "2")
DENS = int(opts.get("dens", "3"))
PR2 = int(opts.get("pr2", "2")); PRL = int(opts.get("prl", "2")); PRM = int(opts.get("prm", "3")); PR1 = int(opts.get("pr1", "1")); LOW = int(opts.get("low", "0")); LATE = int(opts.get("late", "0"))
WPOS = [float(x) for x in opts.get("wpos", "0.0,0.5").split(",")]
VPM = int(opts.get("vpm", "2"))
TC = 3
if PROF: STAMP = True
NAME = "standalone__layernorm_linear__sampling_kernel"
NWAVES = 12
WS = 24576; NWS = 5; XS = 16384; XB = 131072
GF32 = NWS * WS; XE = GF32 + 2304; GBF = XE + 1152; BBF = GBF + 1152; STATS = BBF + 1152; XP = STATS + 896
assert XP + 64 <= XB
LDSB = XB + XS + 12288
RS = 400
out = []
A = out.append; a = A
def x_prev_label_m(new): return any(y == "L_mloop:" for y in new[-4:])
hdr = open("standalone__layernorm_linear__sampling.s.ref").read().split("; Override launch")[0]
A(hdr.rstrip())
A(f"; @launch grid=(256,1,1) block=({NWAVES*64},1,1) lds={LDSB}")
A('.amdgcn_target "amdgcn-amd-amdhsa--gfx950"')
A(".text"); A(f".globl {NAME}"); A(".p2align 8"); A(f".type {NAME},@function"); A(f"{NAME}:")
SX, SW, SG, SB, SO = 16, 20, 24, 28, 32
sWave, sRb, sCs, sCg = 36, 37, 38, 39
cc = [40, 41, 42]
cA, cB, cC = cc
sI = 43
sWb = 44; sOob = 45
t0, t1, t2, t3 = 48, 49, 51, 52
sMask = 50
sSo = 58; sM = 59; sG0 = 47; sSoW = 57
SD = 60
vLane = 1; vT = 2; T = [vT + i for i in range(8)]
vPr = 10
L_ = v(vLane)
def stamp(idx):
    if not PROF: return []
    return ["s_memtime s[70:71]", "s_waitcnt lgkmcnt(0)", f"v_writelane_b32 {v(vPr)}, s70, {idx}"]
BAR = ["s_waitcnt lgkmcnt(0)", "s_barrier"]

if STAMP: A("s_memrealtime s[64:65]")
A("s_cmp_ge_u32 s2, 255"); A("s_cbranch_scc1 L_end")
A("s_load_dwordx8 s[4:11], s[0:1], 0")
A("s_load_dwordx2 s[12:13], s[0:1], 32")
if STAMP: A(f"s_load_dwordx2 s[14:15], s[0:1], 48")
A(f"v_lshrrev_b32 {v(vT)}, 6, v0"); A(f"v_and_b32 {v(vLane)}, 63, v0")
A(f"s_and_b32 {s(t0)}, s2, 7"); A(f"s_lshl_b32 {s(t0)}, {s(t0)}, 5"); A(f"s_lshr_b32 {s(t1)}, s2, 3"); A(f"s_add_u32 {s(t0)}, {s(t0)}, {s(t1)}")
A(f"v_readfirstlane_b32 {s(sWave)}, {v(vT)}")
A(f"s_mul_i32 {s(sRb)}, {s(t0)}, 21846"); A(f"s_lshr_b32 {s(sRb)}, {s(sRb)}, 16")
A(f"s_mul_i32 {s(t1)}, {s(sRb)}, 3"); A(f"s_sub_u32 {s(sCs)}, {s(t0)}, {s(t1)}")
A(f"s_and_b32 {s(sCg)}, {s(sWave)}, 3")
A(f"s_mov_b32 {s(sMask)}, 0xffff0000")
if ROT:
    A(f"s_mul_i32 {s(t0)}, {s(sRb)}, 21846"); A(f"s_lshr_b32 {s(t0)}, {s(t0)}, 16")
    A(f"s_mul_i32 {s(t1)}, {s(t0)}, 3"); A(f"s_sub_u32 {s(t1)}, {s(sRb)}, {s(t1)}")
    A(f"s_mul_i32 {s(t2)}, {s(t0)}, 21846"); A(f"s_lshr_b32 {s(t2)}, {s(t2)}, 16"); A(f"s_mul_i32 {s(t2)}, {s(t2)}, 3"); A(f"s_sub_u32 {s(t0)}, {s(t0)}, {s(t2)}")
    A(f"s_mul_i32 {s(t0)}, {s(t0)}, 3")
    A(f"s_add_u32 {s(t1)}, {s(t1)}, {s(sCs)}")
    for k, cr in enumerate(cc):
        if k: A(f"s_add_u32 {s(t1)}, {s(t1)}, 1")
        A(f"s_cmp_ge_u32 {s(t1)}, 3"); A(f"s_cselect_b32 {s(t2)}, 3, 0"); A(f"s_sub_u32 {s(t1)}, {s(t1)}, {s(t2)}")
        A(f"s_add_u32 {s(cr)}, {s(t0)}, {s(t1)}")
else:
    A(f"s_mov_b32 {s(cA)}, 0"); A(f"s_mov_b32 {s(cB)}, 1"); A(f"s_mov_b32 {s(cC)}, 2")
def rot_c():
    return [f"s_add_u32 {s(t2)}, {s(cA)}, 3", f"s_cmp_ge_u32 {s(t2)}, 9", f"s_cselect_b32 {s(t1)}, 9, 0", f"s_sub_u32 {s(t2)}, {s(t2)}, {s(t1)}",
            f"s_mov_b32 {s(cA)}, {s(cB)}", f"s_mov_b32 {s(cB)}, {s(cC)}", f"s_mov_b32 {s(cC)}, {s(t2)}"]
def adv3(c):
    return [f"s_add_u32 {s(c)}, {s(c)}, 3", f"s_cmp_ge_u32 {s(c)}, 9", f"s_cselect_b32 {s(t1)}, 9, 0", f"s_sub_u32 {s(c)}, {s(c)}, {s(t1)}"]
def wrap(reg, inc, lim, base=0):
    return [f"s_add_u32 {s(reg)}, {s(reg)}, {inc}", f"s_cmp_ge_u32 {s(reg)}, {lim}", f"s_cselect_b32 {s(reg)}, {base}, {s(reg)}"]
def srd(d):
    r, p, nb = d
    return [f"s_mov_b32 {s(r)}, {s(p)}", f"s_mov_b32 {s(r+1)}, {s(p+1)}", f"s_mov_b32 {s(r+2)}, {nb}", f"s_mov_b32 {s(r+3)}, 0x20000"]
def srds(lst):
    o = ["s_waitcnt lgkmcnt(0)"] + stamp(0)
    for d in lst: o += srd(d)
    return o
def sdbg():
    return [f"s_mov_b32 {s(SD)}, s14", f"s_mov_b32 {s(SD+1)}, s15", f"s_mov_b32 {s(SD+2)}, 0x100000", f"s_mov_b32 {s(SD+3)}, 0x20000"] if STAMP else []
dX, dG, dB, dW, dO = (SX, 4, 9437184), (SG, 6, 1152), (SB, 8, 1152), (SW, 10, 663552), (SO, 12, 9437184)
xnt = " nt" if XNT else ""
ont = " nt" if ONT else ""
A(f"s_cmp_ge_u32 {s(sWave)}, 8"); A("s_cbranch_scc1 L_mfma")

def prep_valu(raw, st, G, tm):
    p1 = []; p2 = []
    for d in range(4):
        lo, hi = tm + 2 * d, tm + 2 * d + 1
        p1 += [f"v_lshlrev_b32 {v(lo)}, 16, {v(raw+d)}", f"v_and_b32 {v(hi)}, {s(sMask)}, {v(raw+d)}",
               f"v_add_f32 {v(st)}, {v(st)}, {v(lo)}", f"v_add_f32 {v(st+1)}, {v(st+1)}, {v(hi)}",
               f"v_fmac_f32 {v(st+2)}, {v(lo)}, {v(lo)}", f"v_fmac_f32 {v(st+3)}, {v(hi)}, {v(hi)}"]
        p2 += [f"v_mul_f32 {v(lo)}, {v(lo)}, {v(G+2*d)}", f"v_mul_f32 {v(hi)}, {v(hi)}, {v(G+2*d+1)}", f"v_cvt_pk_bf16_f32 {v(tm+8+d)}, {v(lo)}, {v(hi)}"]
    return p1, p2

R = Regs(11)
vWd = R.alloc("wd", 6); vXd = R.alloc("xd"); vPB_ = R.alloc("pb"); vP = R.alloc("p")
vSa = R.alloc("sa", 6)
vGB = R.alloc("gb"); vG = R.alloc("g")
vSt = R.alloc("stats", 8, 4); vGq = R.alloc("gq", 8, 4); vTm = R.alloc("tmp", 24, 4); vY = R.alloc("y", 4, 2); vPk = R.alloc("pk", 8, 4); vRaw = R.alloc("raw", 24, 4); vRes = R.alloc("res", 4, 2); vG0 = R.alloc("g0", 8, 4)
assert vSa == 20
a(f"s_lshl_b32 {s(t0)}, {s(sCg)}, 1"); a(f"s_add_u32 {s(t1)}, {s(sCg)}, 8"); a(f"s_cmp_ge_u32 {s(sWave)}, 4"); a(f"s_cselect_b32 {s(sG0)}, {s(t0)}, {s(t1)}")
a(f"v_lshrrev_b32 {v(T[0])}, 3, {L_}"); a(f"v_and_b32 {v(T[0])}, 2, {v(T[0])}"); a(f"v_and_b32 {v(T[1])}, 3, {L_}"); a(f"v_xor_b32 {v(T[0])}, {v(T[0])}, {v(T[1])}")
a(f"v_lshrrev_b32 {v(T[1])}, 5, {L_}"); a(f"v_lshl_add_u32 {v(T[0])}, {v(T[1])}, 2, {v(T[0])}"); a(f"v_bfe_u32 {v(T[1])}, {L_}, 2, 3"); a(f"v_lshlrev_b32 {v(T[3])}, 4, {v(T[0])}")
a(f"s_mul_i32 {s(t0)}, {s(sRb)}, 12"); a(f"s_add_u32 {s(t0)}, {s(t0)}, {s(sG0)}"); a(f"s_mul_i32 {s(t0)}, {s(t0)}, 9216")
a(f"v_mul_u32_u24 {v(T[2])}, 1152, {v(T[1])}"); a(f"v_add3_u32 {v(vXd)}, {v(T[2])}, {v(T[3])}, {s(t0)}")
a(f"s_mov_b32 {s(sOob)}, 0")
a(f"s_cmp_ge_u32 {s(sWave)}, 4"); a("s_cbranch_scc1 L_p2")
a(f"s_cmp_ge_u32 {s(sWave)}, 2"); a("s_cbranch_scc1 L_p1")

def xload(ng, buf, creg, tag, oob=False):
    o = [f"s_lshl_b32 {s(sSo)}, {s(creg)}, 7"]
    if oob: o.append(f"s_or_b32 {s(sSo)}, {s(sSo)}, {s(sOob)}")
    for g in range(ng):
        if g: o.append(f"s_add_u32 {s(sSo)}, {s(sSo)}, 9216")
        o.append(f"buffer_load_dwordx4 {v(vRaw+(buf*2+g)*4,4)}, {v(vXd)}, {s(SX,4)}, {s(sSo)} offen{xnt} ;#{tag}")
    return o
def wdma_units(creg, tag, oob=False):
    u = []
    for n in range(12):
        pre = []
        if n == 0:
            pre = [f"s_mul_i32 {s(sSoW)}, {s(creg)}, 73728"] + ([f"s_or_b32 {s(sSoW)}, {s(sSoW)}, {s(sOob)}"] if oob else [])
        elif n == 6: pre = [f"s_add_u32 {s(sSoW)}, {s(sSoW)}, {16*1152}"]
        u.append(pre + [f"s_add_u32 m0, {s(sM)}, {n*1024}", "DELAY", f"buffer_load_dwordx4 {v(vWd+n%6)}, {s(SW,4)}, {s(sSoW)} offen lds ;#{tag}"])
    u[-1] += [f"s_add_u32 {s(sM)}, {s(sM)}, {WS}", f"s_cmp_ge_u32 {s(sM)}, {NWS*WS}", f"s_cselect_b32 s56, {NWS*WS}, 0", f"s_sub_u32 {s(sM)}, {s(sM)}, s56"]
    return u
def weave(valu, units, dens=None):
    o = []; n = len(valu); k = len(units); iv = 0
    for j, u in enumerate(units):
        tgt = min(n, (n * j) // k if dens is None else j * dens)
        o += valu[iv:tgt]; iv = max(iv, tgt)
        for x in u:
            if x == "DELAY":
                if iv < n and valu[iv].startswith("v_"): o.append(valu[iv]); iv += 1
                else: o.append("s_nop 0")
            else: o.append(x)
    o += valu[iv:]
    return o
def prep_setup():
    o = []; a = o.append
    a(f"v_lshlrev_b32 {v(vGB)}, 5, {v(T[0])}"); a(f"v_add_u32 {v(vGB)}, {GF32}, {v(vGB)}")
    a(f"s_lshl_b32 {s(t0)}, {s(sG0)}, 10"); a(f"s_add_u32 {s(t0)}, {s(t0)}, {XB}"); a(f"v_lshlrev_b32 {v(T[2])}, 4, {L_}"); a(f"v_add_u32 {v(vP)}, {s(t0)}, {v(T[2])}")
    for i in range(8): a(f"v_mov_b32 {v(vSt+i)}, 0")
    return o
def gload(creg, dst, tag):
    return [f"s_lshl_b32 {s(t0)}, {s(creg)}, 7", f"buffer_load_dwordx4 {v(dst,4)}, {v(T[3])}, {s(SG,4)}, {s(t0)} offen ;#{tag}"]
def gunpack(src):
    o = []
    for d in range(4): o += [f"v_lshlrev_b32 {v(vGq+2*d)}, 16, {v(src+d)}", f"v_and_b32 {v(vGq+2*d+1)}, {s(sMask)}, {v(src+d)}"]
    return o
def parts(ng, buf):
    un = []; sc = []; stt = []
    for g in range(ng):
        raw = vRaw + (buf * 2 + g) * 4; st = vSt + 4 * g; tm = vTm + 8 * g; y = vY; pk = vPk + 4 * g
        for d in range(4):
            lo, hi = tm + 2 * d, tm + 2 * d + 1
            un += [f"v_lshlrev_b32 {v(lo)}, 16, {v(raw+d)}", f"v_and_b32 {v(hi)}, {s(sMask)}, {v(raw+d)}"]
            sc += [f"v_mul_f32 {v(y+2*(d%2))}, {v(lo)}, {v(vGq+2*d)}", f"v_mul_f32 {v(y+2*(d%2)+1)}, {v(hi)}, {v(vGq+2*d+1)}", f"v_cvt_pk_bf16_f32 {v(pk+d)}, {v(y+2*(d%2))}, {v(y+2*(d%2)+1)}"]
            stt += [f"v_add_f32 {v(st)}, {v(st)}, {v(lo)}", f"v_add_f32 {v(st+1)}, {v(st+1)}, {v(hi)}", f"v_fmac_f32 {v(st+2)}, {v(lo)}, {v(lo)}", f"v_fmac_f32 {v(st+3)}, {v(hi)}, {v(hi)}"]
        sc.append(f"ds_write_b128 {v(vP)}, {v(pk,4)} offset:{g*1024}")
    return un, sc, stt
def resolve_vm(seq):
    q = []; res = {}
    for x in seq:
        if x.startswith("WAITVM"):
            tags, wid = x[7:].split("@"); tags = tags.split(",")
            last = max([i for i, t in enumerate(q) if t in tags], default=-1)
            n = len(q) - 1 - last if last >= 0 else 63
            res[wid] = min(res.get(wid, 63), n)
        elif ";#" in x: q.append(x.split(";#")[1])
    return res
def interval(role, j, wid, loop):
    ng = 2 if role == "P2" else 1
    nW = 12 if role == "PL" else 0
    hi = {"PL": PRL, "P2": PR2, "P1": PR1}[role]
    k = j % 3; kn = (k + 1) % 3; cn = cc[kn]; cw = cc[k]
    un, sc, stt = parts(ng, k)
    gnext = [f"s_lshl_b32 {s(t0)}, {s(cn)}, 8", f"v_add_u32 {v(vG)}, {s(t0)}, {v(vGB)}", f"ds_read_b128 {v(vGq,4)}, {v(vG)}", f"ds_read_b128 {v(vGq+4,4)}, {v(vG)} offset:16"]
    if j == 8: gnext = []
    flip = [f"v_xor_b32 {v(vP)}, {XS}, {v(vP)}"]
    o = [f"s_setprio {hi}"] if hi else []
    if j == 0:
        return o + [f"WAITVM x0,g0@{wid}"] + gunpack(vG0) + un + sc + flip + BAR
    moreX = loop or j + 3 <= 8
    moreW = nW and (loop or j + 2 <= 8)
    rl = (adv3(cw) + xload(ng, k, cw, f"x{j+3}", oob=(loop and k in (0, 1)))) if moreX else []
    pre = []
    if j == 1:
        _, _, st0 = parts(ng, 0)
        pre = xload(ng, 2, cC, "x2") + adv3(cA) + xload(ng, 0, cA, "x3")
        pre += (weave(st0, wdma_units(cC, "W2")) if nW else st0) + [f"WAITVM g1@{wid}g"] + gunpack(vG0 + 4)
    o += pre + [f"WAITVM x{j}@{wid}"]
    if moreW:
        units = wdma_units(cc[(k + 2) % 3], f"W{j+2}", oob=(loop and k == 1))
        crit = un + (["\n".join(rl)] if rl else []) + sc + gnext
        nb = min(12, (len(crit) + DENS - 1) // DENS)
        o += weave(crit, units[:nb], DENS)
        tail = weave(stt, units[nb:]) if nb < 12 else stt
    else:
        o += un + rl + sc + gnext
        tail = stt
    o += ([f"s_setprio {LOW}"] if (hi != LOW and not nW) else []) + flip + tail
    if j < 8: o += ([f"WAITVM W{j}@{wid}w"] if nW else []) + BAR
    return o
def prep_role(role):
    ng = 2 if role == "P2" else 1
    nW = 12 if role == "PL" else 0
    pro = gload(cA, vG0, "g0") + xload(ng, 0, cA, "x0") + prep_setup() + xload(ng, 1, cB, "x1") + gload(cB, vG0 + 4, "g1")
    if nW: pro += srd(dW) + waddr(vWd, f"s_mul_i32 {s(t1)}, {s(sWave)}, {32*1152}") + [f"s_mul_i32 {s(sM)}, {s(sWave)}, 12288", f"s_add_u32 {s(sM)}, {s(sM)}, {2*WS}"]
    pro += stamp(1)
    i0 = interval(role, 0, f"{role}0", False); i1 = interval(role, 1, f"{role}1", False)
    body = lambda base: [x for j in (base, base + 1, base + 2) for x in interval(role, j, f"{role}L{j%3}", True)]
    i8 = interval(role, 8, f"{role}8", False)
    dyn = pro + i0 + i1 + body(2) + body(5) + i8
    res = resolve_vm(dyn)
    code = pro + i0 + stamp(2) + i1 + stamp(3) + [f"L_loop{role}:"] + body(2)
    code += [f"s_cmp_eq_u32 {s(sOob)}, 0", f"s_mov_b32 {s(sOob)}, 0x40000000", f"s_cbranch_scc1 L_loop{role}"]
    code += i8 + ["s_branch L_pstats"]
    return [(f"s_waitcnt vmcnt({res[x.split('@')[1]]})" if x.startswith("WAITVM") else x.split(" ;#")[0]) for x in code]
def waddr(dst, rowoff):
    o = []; a = o.append
    a(f"s_mul_i32 {s(t0)}, {s(sCs)}, 384"); a(rowoff); a(f"s_add_u32 {s(t0)}, {s(t0)}, {s(t1)}")
    for n in range(3):
        a(f"v_add_u32 {v(T[4])}, {n*64}, {L_}")
        a(f"v_mul_u32_u24 {v(T[5])}, 2731, {v(T[4])}"); a(f"v_lshrrev_b32 {v(T[5])}, 16, {v(T[5])}")
        a(f"v_mul_u32_u24 {v(T[6])}, 24, {v(T[5])}"); a(f"v_sub_u32 {v(T[4])}, {v(T[4])}, {v(T[6])}")
        a(f"v_and_b32 {v(T[6])}, 2, {v(T[5])}"); a(f"v_xor_b32 {v(T[4])}, {v(T[4])}, {v(T[6])}")
        a(f"v_mul_u32_u24 {v(T[5])}, 1152, {v(T[5])}"); a(f"v_lshl_add_u32 {v(T[4])}, {v(T[4])}, 4, {v(T[5])}"); a(f"v_add_u32 {v(dst+n)}, {s(t0)}, {v(T[4])}")
        a(f"v_xor_b32 {v(T[4])}, 64, {v(dst+n)}"); a(f"v_add_u32 {v(dst+n+3)}, 9216, {v(T[4])}")
    return o
if PRL: a(f"s_setprio {PRL}")
out += srds([dX, dG])
out += prep_role("PL")
a("L_p1:")
out += srds([dX, dG])
out += prep_role("P1")
a("L_p2:")
if PR2: a(f"s_setprio {PR2}")
out += srds([dX, dG])
out += prep_role("P2")[:-1]
a("L_pstats:")
def stats_multi(sets, res):
    o = []; a = o.append
    def each(fn):
        for k, st_ in enumerate(sets): fn(k, *st_)
    each(lambda k, p, q, r, w: (a(f"v_add_f32 {v(p)}, {v(p)}, {v(q)}"), a(f"v_add_f32 {v(r)}, {v(r)}, {v(w)}")))
    for qp in ("[1,0,3,2]", "[2,3,0,1]"):
        each(lambda k, p, q, r, w: (a(f"v_add_f32_dpp {v(p)}, {v(p)}, {v(p)} quad_perm:{qp} row_mask:0xf bank_mask:0xf"), a(f"v_add_f32_dpp {v(r)}, {v(r)}, {v(r)} quad_perm:{qp} row_mask:0xf bank_mask:0xf")))
    each(lambda k, p, q, r, w: (a(f"v_mov_b32 {v(q)}, {v(p)}"), a(f"v_mov_b32 {v(w)}, {v(r)}")))
    each(lambda k, p, q, r, w: (a(f"v_permlane32_swap_b32 {v(p)}, {v(q)}"), a(f"v_permlane32_swap_b32 {v(r)}, {v(w)}")))
    each(lambda k, p, q, r, w: (a(f"v_add_f32 {v(p)}, {v(p)}, {v(q)}"), a(f"v_add_f32 {v(r)}, {v(r)}, {v(w)}")))
    each(lambda k, p, q, r, w: (a(f"v_mul_f32 {v(p)}, 0x3ae38e39, {v(p)}"), a(f"v_mul_f32 {v(r)}, 0x3ae38e39, {v(r)}")))
    each(lambda k, p, q, r, w: a(f"v_fma_f32 {v(r)}, -{v(p)}, {v(p)}, {v(r)}"))
    each(lambda k, p, q, r, w: a(f"v_max_f32 {v(r)}, 0, {v(r)}"))
    each(lambda k, p, q, r, w: a(f"v_cvt_pk_bf16_f32 {v(q)}, {v(p)}, {v(r)}"))
    each(lambda k, p, q, r, w: (a(f"v_and_b32 {v(r)}, {s(sMask)}, {v(q)}"), a(f"v_lshlrev_b32 {v(p)}, 16, {v(q)}")))
    each(lambda k, p, q, r, w: a(f"v_add_f32 {v(r)}, 0x3727c5ac, {v(r)}"))
    each(lambda k, p, q, r, w: a(f"v_cvt_pk_bf16_f32 {v(q)}, {v(r)}, {v(r)}"))
    each(lambda k, p, q, r, w: a(f"v_and_b32 {v(r)}, {s(sMask)}, {v(q)}"))
    each(lambda k, p, q, r, w: a(f"v_sqrt_f32 {v(r)}, {v(r)}"))
    each(lambda k, p, q, r, w: a(f"v_cvt_pk_bf16_f32 {v(q)}, {v(r)}, {v(r)}"))
    each(lambda k, p, q, r, w: a(f"v_and_b32 {v(r)}, {s(sMask)}, {v(q)}"))
    each(lambda k, p, q, r, w: a(f"v_rcp_f32 {v(res+2*k)}, {v(r)}"))
    each(lambda k, p, q, r, w: a(f"v_mul_f32_e64 {v(res+2*k+1)}, -{v(p)}, {v(res+2*k)}"))
    return o
a(f"s_lshl_b32 {s(t0)}, {s(sG0)}, 6"); a(f"s_add_u32 {s(t0)}, {s(t0)}, {STATS}")
a(f"v_bfe_u32 {v(T[2])}, {L_}, 2, 3"); a(f"v_lshlrev_b32 {v(T[2])}, 3, {v(T[2])}"); a(f"v_add_u32 {v(T[2])}, {s(t0)}, {v(T[2])}"); a(f"v_add_u32 {v(T[1])}, 64, {v(T[2])}")
a(f"s_cmp_ge_u32 {s(sWave)}, 4"); a("s_cbranch_scc1 L_ps2")
a(f"v_and_b32 {v(T[0])}, 3, {L_}"); a(f"v_lshrrev_b32 {v(T[1])}, 5, {L_}"); a(f"v_lshl_add_u32 {v(T[0])}, {v(T[1])}, 2, {v(T[0])}"); a(f"v_lshlrev_b32 {v(T[0])}, 3, {v(T[0])}")
a(f"v_add_u32 {v(T[0])}, {XP}, {v(T[0])}")
a(f"ds_read_b64 {v(vGq,2)}, {v(T[0])}"); a(f"v_mov_b32 {v(T[1])}, {STATS + 96*8}"); a("s_waitcnt lgkmcnt(0)")
a(f"v_mov_b32 {v(vSt+4)}, {v(vGq)}"); a(f"v_mov_b32 {v(vSt+6)}, {v(vGq+1)}")
a("L_ps2:")
out += stats_multi([(vSt + 4 * g, vSt + 4 * g + 1, vSt + 4 * g + 2, vSt + 4 * g + 3) for g in range(2)], vRes)
a(f"ds_write_b64 {v(T[2])}, {v(vRes,2)}"); a(f"ds_write_b64 {v(T[1])}, {v(vRes+2,2)}")
a("s_waitcnt vmcnt(0)")
out += stamp(19)
out += BAR
a("s_setprio 0")
out += srd(dO) + sdbg()
a(f"s_mul_i32 {s(t0)}, {s(sRb)}, {96*1152}"); a(f"s_mul_i32 {s(t1)}, {s(sCs)}, 384"); a(f"s_add_u32 {s(t0)}, {s(t0)}, {s(t1)}")
a(f"s_mul_i32 {s(t3)}, {s(sWave)}, 9216"); a(f"s_add_u32 {s(t0)}, {s(t0)}, {s(t3)}"); a(f"s_mul_i32 {s(t3)}, {s(sWave)}, {8*RS}")
for n in range(3):
    a(f"v_add_u32 {v(T[4])}, {n*64}, {L_}")
    a(f"v_mul_u32_u24 {v(T[5])}, 2731, {v(T[4])}"); a(f"v_lshrrev_b32 {v(T[5])}, 16, {v(T[5])}")
    a(f"v_mul_u32_u24 {v(T[6])}, 24, {v(T[5])}"); a(f"v_sub_u32 {v(T[4])}, {v(T[4])}, {v(T[6])}"); a(f"v_lshlrev_b32 {v(T[4])}, 4, {v(T[4])}")
    a(f"v_mul_u32_u24 {v(T[6])}, {RS}, {v(T[5])}"); a(f"v_add3_u32 v{20+n}, {v(T[6])}, {v(T[4])}, {s(t3)}")
    a(f"v_mul_u32_u24 {v(T[6])}, 1152, {v(T[5])}"); a(f"v_add3_u32 v{23+n}, {v(T[6])}, {v(T[4])}, {s(t0)}")
a(f"v_lshlrev_b32 {v(T[4])}, 4, {L_}"); a(f"v_add_u32 {v(T[6])}, {96*RS}, {v(T[4])}")
a(f"s_add_u32 {s(t2)}, {s(sRb)}, 8160"); a(f"s_mul_i32 {s(t2)}, {s(t2)}, 1152"); a(f"s_add_u32 {s(t2)}, {s(t2)}, {s(t1)}")
a(f"v_add_u32 {v(T[4])}, {s(t2)}, {v(T[4])}"); a(f"v_mov_b32 {v(T[5])}, 0x40000000"); a(f"v_cmp_gt_u32 vcc, 24, {L_}"); a("s_nop 1"); a(f"v_cndmask_b32 {v(T[7])}, {v(T[5])}, {v(T[4])}, vcc")
a(f"s_mov_b32 {s(sSo)}, {8*9216}")
a("s_barrier")
out += stamp(22)
a(f"s_cmp_ge_u32 {s(sWave)}, 4"); a("s_cbranch_scc1 L_stB")
st = []
for k in range(3): st.append(f"ds_read_b128 {v(vTm+4*k,4)}, v{20+k}")
for k in range(3): st.append(f"buffer_store_dwordx4 {v(vTm+4*k,4)}, v{23+k}, {s(SO,4)}, 0 offen{ont}")
out += auto_lgkm(st)
a("s_barrier"); a("s_barrier")
out += stamp(23)
st = []
for k in range(3): st.append(f"ds_read_b128 {v(vTm+12+4*k,4)}, v{20+k} offset:{64*RS}")
for k in range(3): st.append(f"buffer_store_dwordx4 {v(vTm+12+4*k,4)}, v{23+k}, {s(SO,4)}, {s(sSo)} offen{ont}")
out += auto_lgkm(st)
a("s_branch L_fin")
a("L_stB:")
a(f"s_cmp_eq_u32 {s(sWave)}, 4"); a("s_cbranch_scc0 L_st3")
a(f"ds_read_b128 {v(vTm+12,4)}, {v(T[6])}"); a("s_waitcnt lgkmcnt(0)"); a(f"buffer_store_dwordx4 {v(vTm+12,4)}, {v(T[7])}, {s(SO,4)}, 0 offen{ont}")
a("L_st3:")
a("s_barrier")
st = []
for k in range(3): st.append(f"ds_read_b128 {v(vTm+4*k,4)}, v{20+k}")
for k in range(3): st.append(f"buffer_store_dwordx4 {v(vTm+4*k,4)}, v{23+k}, {s(SO,4)}, 0 offen{ont}")
out += auto_lgkm(st)
a("s_barrier")
out += stamp(23)
a("s_branch L_fin")

a("L_mfma:")
if PRM: a(f"s_setprio {PRM}")
vWrB, vWr, vXr, vSB, vS = 11, 12, 13, 14, 15
vAcc = 16; vWF = 100; vXF = 124; vEe = 152; vU = 164; NV = 168
vE = vAcc
vMW = vXF
out += waddr(vMW, f"s_mul_i32 {s(t1)}, {s(sCg)}, {16*1152}")
a(f"v_lshlrev_b32 {v(T[4])}, 4, {L_}")
a(f"s_mul_i32 {s(t0)}, {s(sCg)}, 576"); a(f"v_add_u32 {v(T[6])}, {s(t0)}, {v(T[4])}")
a(f"v_mov_b32 {v(T[5])}, 0x40000000"); a(f"v_cmp_gt_u32 vcc, 36, {L_}"); a(f"s_add_u32 {s(t1)}, {s(sRb)}, 8160"); a(f"s_mul_i32 {s(t1)}, {s(t1)}, 1152"); a(f"v_cndmask_b32 {v(vE+40)}, {v(T[5])}, {v(T[6])}, vcc")
out += srds([dX, dG, dB, dW])
a(f"s_cmp_ge_u32 {s(sCg)}, 2"); a("s_cbranch_scc1 L_mt")
a(f"buffer_load_dwordx4 {v(vE,4)}, {v(vE+40)}, {s(SG,4)}, 0 offen")
a(f"buffer_load_dwordx4 {v(vE+4,4)}, {v(vE+40)}, {s(SX,4)}, {s(t1)} offen")
a("s_branch L_m1")
a("L_mt:")
a(f"s_cmp_eq_u32 {s(sCg)}, 2"); a("s_cbranch_scc0 L_mtb")
a(f"s_mov_b32 m0, {GBF}"); a("s_nop 0"); a(f"buffer_load_dwordx4 {v(T[4])}, {s(SG,4)}, 0 offen lds")
a("s_mov_b64 exec, 0xff"); a(f"buffer_load_dwordx4 {v(T[4])}, {s(SG,4)}, 0 offen offset:1024 lds"); a("s_mov_b64 exec, -1")
a("s_branch L_m1")
a("L_mtb:")
a(f"s_mov_b32 m0, {BBF}"); a("s_nop 0"); a(f"buffer_load_dwordx4 {v(T[4])}, {s(SB,4)}, 0 offen lds")
a("s_mov_b64 exec, 0xff"); a(f"buffer_load_dwordx4 {v(T[4])}, {s(SB,4)}, 0 offen offset:1024 lds"); a("s_mov_b64 exec, -1")
a("L_m1:")
a(f"s_mul_i32 {s(sM)}, {s(sCg)}, 6144")
for ci, cr in enumerate((cA, cB)):
    a(f"s_mul_i32 {s(sSoW)}, {s(cr)}, 73728")
    for n in range(6):
        a(f"s_add_u32 m0, {s(sM)}, {ci*WS + n*1024}"); a("s_nop 0"); a(f"buffer_load_dwordx4 {v(vMW+n)}, {s(SW,4)}, {s(sSoW)} offen lds")
a("s_setprio 0")
out += sdbg()
a(f"v_lshrrev_b32 {v(T[0])}, 4, {L_}"); a(f"v_bfe_u32 {v(T[1])}, {L_}, 2, 2")
a(f"v_lshl_add_u32 {v(T[2])}, {v(T[0])}, 3, {v(T[1])}"); a(f"v_mul_u32_u24 {v(T[2])}, 384, {v(T[2])}")
a(f"v_and_b32 {v(T[4])}, 2, {v(T[1])}"); a(f"v_and_b32 {v(T[5])}, 1, {v(T[0])}"); a(f"v_lshl_or_b32 {v(T[4])}, {v(T[5])}, 2, {v(T[4])}")
a(f"v_bfe_u32 {v(T[5])}, {L_}, 1, 1"); a(f"s_lshl_b32 {s(t0)}, {s(sCg)}, 1"); a(f"v_add_u32 {v(T[5])}, {s(t0)}, {v(T[5])}"); a(f"v_xor_b32 {v(T[4])}, {v(T[4])}, {v(T[5])}")
a(f"v_lshl_add_u32 {v(T[2])}, {v(T[4])}, 4, {v(T[2])}"); a(f"v_and_b32 {v(T[5])}, 1, {L_}"); a(f"v_lshl_add_u32 {v(vWrB)}, {v(T[5])}, 3, {v(T[2])}")
a(f"v_and_b32 {v(T[1])}, 7, {L_}"); a(f"v_lshrrev_b32 {v(T[2])}, 1, {v(T[1])}"); a(f"v_and_b32 {v(T[2])}, 2, {v(T[2])}"); a(f"v_xor_b32 {v(T[2])}, {v(T[2])}, {v(T[0])}")
a(f"v_lshl_add_u32 {v(T[2])}, {v(T[1])}, 2, {v(T[2])}"); a(f"v_lshlrev_b32 {v(T[2])}, 4, {v(T[2])}")
a(f"v_bfe_u32 {v(T[4])}, {L_}, 3, 1"); a(f"v_lshl_add_u32 {v(T[2])}, {v(T[4])}, 10, {v(T[2])}")
a(f"v_add_u32 {v(vXr)}, {XB}, {v(T[2])}")
a(f"v_and_b32 {v(T[1])}, 15, {L_}"); a(f"v_min_u32 {v(T[2])}, 2, {v(T[1])}"); a(f"v_mul_u32_u24 {v(T[2])}, 1152, {v(T[2])}")
a(f"v_lshl_add_u32 {v(T[2])}, {v(T[0])}, 4, {v(T[2])}"); a(f"v_add_u32 {v(vSB)}, {XE}, {v(T[2])}")
a(f"v_lshlrev_b32 {v(T[6])}, 3, {v(T[1])}"); a(f"v_add_u32 {v(T[6])}, {STATS}, {v(T[6])}")
a(f"v_mul_u32_u24 {v(T[7])}, {RS}, {v(T[1])}"); a(f"v_lshl_add_u32 {v(T[7])}, {v(T[0])}, 3, {v(T[7])}")
a(f"s_lshl_b32 {s(t0)}, {s(sCg)}, 5"); a(f"v_add_u32 {v(T[7])}, {s(t0)}, {v(T[7])}")
a(f"v_mov_b32 {v(vWr)}, {v(vWrB)}"); a(f"s_lshl_b32 {s(t0)}, {s(cA)}, 7"); a(f"v_add_u32 {v(vS)}, {s(t0)}, {v(vSB)}")
for i in range(44, 84): a(f"v_mov_b32 {v(vAcc+i)}, 0")
if PRM: a(f"s_setprio {PRM}")
a(f"s_cmp_ge_u32 {s(sCg)}, 2"); a("s_cbranch_scc1 L_m3")
Gt = vE + 8; St = vE + 16; tm = vE + 20
for i in range(4): a(f"v_mov_b32 {v(St+i)}, 0")
a(f"v_lshlrev_b32 {v(T[4])}, 1, {v(vE+40)}"); a(f"v_add_u32 {v(T[4])}, {GF32}, {v(T[4])}"); a(f"v_add_u32 {v(T[5])}, {XE}, {v(vE+40)}")
a("s_waitcnt vmcnt(13)")
for d in range(4):
    a(f"v_lshlrev_b32 {v(Gt+2*d)}, 16, {v(vE+d)}"); a(f"v_and_b32 {v(Gt+2*d+1)}, {s(sMask)}, {v(vE+d)}")
a("s_mov_b32 exec_lo, -1"); a("s_mov_b32 exec_hi, 0xf")
a(f"ds_write_b128 {v(T[4])}, {v(Gt,4)}"); a(f"ds_write_b128 {v(T[4])}, {v(Gt+4,4)} offset:16")
a("s_mov_b64 exec, -1")
a("s_waitcnt vmcnt(12)")
p1, p2 = prep_valu(vE + 4, St, Gt, tm); out += p1 + p2
a("s_mov_b32 exec_lo, -1"); a("s_mov_b32 exec_hi, 0xf")
a(f"ds_write_b128 {v(T[5])}, {v(tm+8,4)}")
a("s_mov_b64 exec, -1")
a(f"v_add_f32 {v(St)}, {v(St)}, {v(St+1)}"); a(f"v_add_f32 {v(St+1)}, {v(St+2)}, {v(St+3)}"); a("s_nop 1")
for dp in ("quad_perm:[1,0,3,2]", "quad_perm:[2,3,0,1]", "row_half_mirror", "row_mirror"):
    a(f"v_add_f32_dpp {v(St)}, {v(St)}, {v(St)} {dp} row_mask:0xf bank_mask:0xf")
    a(f"v_add_f32_dpp {v(St+1)}, {v(St+1)}, {v(St+1)} {dp} row_mask:0xf bank_mask:0xf"); a("s_nop 1")
a(f"v_lshlrev_b32 {v(T[4])}, 3, {v(T[0])}"); a(f"s_lshl_b32 {s(t0)}, {s(sCg)}, 5"); a(f"s_add_u32 {s(t0)}, {s(t0)}, {XP}"); a(f"v_add_u32 {v(T[4])}, {s(t0)}, {v(T[4])}")
a(f"ds_write_b64 {v(T[4])}, {v(St,2)}")
a("s_waitcnt lgkmcnt(0)")
a("L_m3:")
for i in range(44): a(f"v_mov_b32 {v(vAcc+i)}, 0")
a(f"s_mov_b32 {s(sWb)}, 0"); a(f"s_mov_b32 {s(sI)}, 0")
ORD = [6, 0, 1, 2, 3, 4, 5]
def wreads(hh):
    wf = vWF + 12 * hh
    return [x for u in range(3) for x in (f"ds_read_b64_tr_b16 {v(wf+4*u,2)}, {v(vWr)} offset:{u*128 + hh*12288}", f"ds_read_b64_tr_b16 {v(wf+4*u+2,2)}, {v(vWr)} offset:{u*128 + hh*12288 + 1536}")]
def xread(hh, pos, slot=None):
    Tt = ORD[pos]; sl = pos if slot is None else slot
    if Tt == 6: return f"ds_read_b128 {v(vXF+4*sl,4)}, {v(vS)} offset:{hh*64}"
    return f"ds_read_b128 {v(vXF+4*sl,4)}, {v(vXr)} offset:{Tt*2048 + hh*512}"
def mf(hh, pos, slot=None):
    Tt = ORD[pos]; wf = vWF + 12 * hh; sl = pos if slot is None else slot
    return [f"v_mfma_f32_16x16x32_bf16 {v(vAcc+(Tt*3+u)*4,4)}, {v(wf+4*u,4)}, {v(vXF+4*sl,4)}, {v(vAcc+(Tt*3+u)*4,4)}" for u in range(3)]
def part_carry():
    W0 = wreads(0)
    o = []; pend = W0[:2] + [xread(0, 0)] + W0[2:] + [xread(0, p) for p in range(1, TC)]
    k = 0
    for pos in range(TC, 7):
        for x in mf(1, pos):
            n = 2 if k < 3 else 1
            o.append(x); o += pend[:n]; pend = pend[n:]; k += 1
        pend.append(xread(0, pos))
    return o + pend
def part_main(salu):
    o = []; pend = wreads(1); sl = list(salu)
    for pos in range(7):
        for x in mf(0, pos):
            o.append(x)
            if pend: o += pend[:1]; pend = pend[1:]
            o += sl[:1]; sl = sl[1:]
        pend.append(xread(1, pos))
    assert not sl
    pend = pend + [f"v_xor_b32 {v(vXr)}, {XS}, {v(vXr)}", f"v_add_u32 {v(vWr)}, {s(sWb)}, {v(vWrB)}", f"s_lshl_b32 {s(t0)}, {s(cA)}, 7", f"v_add_u32 {v(vS)}, {s(t0)}, {v(vSB)}"]
    for pos in range(TC):
        for x in mf(1, pos):
            o.append(x); o += pend[:1]; pend = pend[1:]
    return o + pend
a("s_waitcnt vmcnt(6)")
out += stamp(1)
out += BAR
out += stamp(2)
out += wreads(0) + [xread(0, p) for p in range(7)] + ["s_waitcnt lgkmcnt(0)", "s_branch L_mmid"]
a("L_mloop:")
a("s_waitcnt vmcnt(0)")
out += BAR
salu = rot_c() + wrap(sWb, WS, NWS * WS) + [f"s_add_u32 {s(sI)}, {s(sI)}, 1"]
body = auto_lgkm(part_carry() + ["L_mmid:"] + part_main(salu) + [f"s_cmp_lt_u32 {s(sI)}, 8", "s_cbranch_scc1 L_mloop"])
out += body
out += BAR
out += stamp(20)
fin = []
eR = vEe; dRs = vXF + 16
sRl = {6: 2, 0: 4, 1: 6, 2: 2, 3: 4, 4: 6, 5: 2}
M = []
pend = wreads(0) + [xread(0, 0), xread(0, 1), xread(0, 2)]
for pos in range(TC, 7):
    for x in mf(1, pos):
        M.append([x] + pend[:1]); pend = pend[1:]
pend = wreads(1) + [xread(1, 0, 3)]
seq = [(0, 0, 0), (0, 1, 1), (0, 2, 2), (1, 0, 3)]
after = {0: [xread(1, 1, 0)], 1: [xread(1, 2, 1)], 2: [xread(0, 3, 2)], 3: [xread(1, 3, 3)]}
seq += [(1, 1, 0), (1, 2, 1), (0, 3, 2), (1, 3, 3)]
after.update({4: [xread(0, 4, 0)], 5: [xread(1, 4, 1)], 6: [xread(0, 5, 2)], 7: [xread(1, 5, 3)]})
seq += [(0, 4, 0), (1, 4, 1), (0, 5, 2), (1, 5, 3)]
after.update({8: [xread(0, 6, 0)], 9: [xread(1, 6, 1)]})
seq += [(0, 6, 0), (1, 6, 1)]
done_at = {}
for i, (hh, pos, sl) in enumerate(seq):
    for x in mf(hh, pos, sl):
        M.append([x] + pend[:1]); pend = pend[1:]
    pend += after.get(i, [])
    if hh == 1: done_at[pos] = len(M)
assert not pend
def epi_tile(pos, pk):
    Tt = ORD[pos]; sR = sRl[Tt]; o = []
    for u in range(3):
        a_ = vAcc + (Tt * 3 + u) * 4
        if pk:
            for hf in range(2): o.append(f"v_pk_fma_f32 {v(vU+2*hf,2)}, {v(eR+4*u+2*hf,2)}, {v(sR,2)}, {v(dRs+4*u+2*hf,2)} op_sel:[0,1,0] op_sel_hi:[1,1,1]")
            for hf in range(2): o.append(f"v_pk_fma_f32 {v(vU+2*hf,2)}, {v(a_+2*hf,2)}, {v(sR,2)}, {v(vU+2*hf,2)} op_sel:[0,0,0] op_sel_hi:[1,0,1]")
        else:
            for j in range(4): o.append(f"v_fma_f32 {v(vU+j)}, {v(eR+4*u+j)}, {v(sR+1)}, {v(dRs+4*u+j)}")
            for j in range(4): o.append(f"v_fmac_f32 {v(vU+j)}, {v(a_+j)}, {v(sR)}")
        o.append(f"v_cvt_pk_bf16_f32 {v(a_)}, {v(vU)}, {v(vU+1)}"); o.append(f"v_cvt_pk_bf16_f32 {v(a_+1)}, {v(vU+2)}, {v(vU+3)}")
        o.append(f"ds_write_b64 {v(T[7])}, {v(a_,2)} offset:{Tt*16*RS + u*128}")
    if pos + 3 < 7: o.append(f"ds_read_b64 {v(sR,2)}, {v(T[6])} offset:{ORD[pos+3]*128}")
    if pos in (2, 4): o += BAR
    return o
dpp = []
for u in range(3):
    for j in range(4):
        dpp.append(f"v_mov_b32_dpp {v(eR+4*u+j)}, {v(vAcc+(18+u)*4+j)} row_newbcast:1 row_mask:0xf bank_mask:0xf")
        dpp.append(f"v_mov_b32_dpp {v(dRs+4*u+j)}, {v(vAcc+(18+u)*4+j)} row_newbcast:2 row_mask:0xf bank_mask:0xf")
fin += [f"ds_read_b64 {v(sRl[ORD[p]],2)}, {v(T[6])} offset:{ORD[p]*128}" for p in range(3)]
LAG = 4
queue = []; nextpos = 0; started = False
for i, grp in enumerate(M):
    fin += grp
    if not started and i + 1 >= done_at[0] + LAG: queue += dpp; started = True
    while started and nextpos < 7 and i + 1 >= done_at[nextpos] + LAG and len(queue) < 40:
        queue += epi_tile(nextpos, False); nextpos += 1
    n = 0
    while queue and n < VPM:
        x = queue.pop(0); fin.append(x)
        if x.startswith("v_"): n += 1
fin += stamp(21)
fin += queue
if nextpos == 7 or len(queue) < 10: fin.append("s_nop 7")
for p in range(nextpos, 7): fin += epi_tile(p, True)
fin += stamp(22)
fin += BAR
fin += stamp(23)
out += auto_lgkm(fin)
a("L_fin:")
if PROF:
    out.extend(stamp(24)); A("s_waitcnt vmcnt(0)"); out.extend(stamp(25))
    A(f"s_mul_i32 s68, s2, {NWAVES}"); A(f"s_add_u32 s68, s68, {s(sWave)}"); A("s_lshl_b32 s68, s68, 8"); A("s_add_u32 s68, s68, 0x10000")
    A(f"v_lshlrev_b32 v3, 2, {L_}"); A(f"buffer_store_dword {v(vPr)}, v3, {s(SD,4)}, s68 offen")
if STAMP:
    A("s_waitcnt vmcnt(0)"); A("s_barrier"); A("s_memrealtime s[66:67]"); A("s_waitcnt lgkmcnt(0)")
    A(f"s_cmp_lg_u32 {s(sWave)}, 0"); A("s_cbranch_scc1 L_end")
    A("v_mov_b32 v4, s64"); A("v_mov_b32 v5, s65"); A("v_mov_b32 v6, s66"); A("v_mov_b32 v7, s67")
    A("s_lshl_b32 s68, s2, 4"); A("v_mov_b32 v3, s68"); A("s_mov_b64 exec, 1")
    A(f"buffer_store_dwordx4 v[4:7], v3, {s(SD,4)}, 0 offen")
A("L_end:"); A("s_endpgm")
A('.section .rodata,"a"'); A(".p2align 6"); A(f".amdhsa_kernel {NAME}")
nv = (max(NV, R.n) + 7) // 8 * 8
A(f"  .amdhsa_next_free_vgpr {nv}"); A("  .amdhsa_next_free_sgpr 72"); A(f"  .amdhsa_accum_offset {nv}")
A("  .amdhsa_group_segment_fixed_size 0"); A("  .amdhsa_kernarg_size 56"); A("  .amdhsa_user_sgpr_count 2")
A("  .amdhsa_user_sgpr_kernarg_segment_ptr 1"); A("  .amdhsa_system_sgpr_workgroup_id_x 1"); A(".end_amdhsa_kernel")
NOBAR = opts.get("nobar", "0") == "1"
if NOBAR:
    new = []; act = False
    for x in out:
        if not x: continue
        if x.startswith("L_loopP") or x.startswith("L_mloop"): act = True
        if act and x.startswith("s_cbranch_scc1 L_"): act = False
        if act and x == "s_barrier":
            if x_prev_label_m(new): new.append(f"s_cmp_eq_u32 {s(sI)}, 1"); new.append("s_cbranch_scc0 L_nb"); new.append(x); new.append("L_nb:")
            continue
        new.append(x)
    out = new
FINE = opts.get("fine", "0") == "1"
if FINE:
    new = []; active = False; idx = 0; cnt = 0; lab = 0
    def mark():
        global idx
        if idx < 15:
            new.append(f"s_memtime s[{72+2*idx}:{73+2*idx}]"); idx += 1
    for x in out:
        if not x: continue
        if x.startswith("L_loopP"):
            active = "P"; idx = 0; cnt = 0; new.append(x); mark(); continue
        if x.startswith("L_mloop"):
            active = "M0"; new.append(x); continue
        if active == "M0" and x == "s_barrier":
            new.append(x); lab += 1
            new += [f"s_cmp_eq_u32 {s(sI)}, 4", f"s_cbranch_scc0 L_nf{lab}"] + [f"v_writelane_b32 {v(vPr)}, s{72+2*i}, {30+i}" for i in range(15)] + [f"L_nf{lab}:"]
            active = "M"; idx = 0; cnt = 0; mark(); continue
        if active == "M":
            if x.startswith("v_mfma"):
                cnt += 1
                if cnt % 3 == 1 and cnt > 1: mark()
            if x.startswith("s_cmp_lt_u32"): mark(); active = False
        if active == "P":
            if x.startswith("ds_write_b128") or x.startswith("s_waitcnt vmcnt") or x.startswith("buffer_load_dwordx4 v["):
                mark(); new.append(x); mark(); continue
            if x == "s_waitcnt lgkmcnt(0)": mark()
            if x == "s_barrier":
                mark(); new.append(x); new.append("s_waitcnt lgkmcnt(0)")
                new += [f"v_writelane_b32 {v(vPr)}, s{72+2*i}, {30+i}" for i in range(idx)]
                active = False; continue
        new.append(x)
    out = [x.replace("next_free_sgpr 72", "next_free_sgpr 102") for x in new]
print("\n".join(x for x in out if x))
```

```python
import re
VR = re.compile(r'\bv\[(\d+):(\d+)\]|\bv(\d+)\b')
def vregs(s):
    out = []
    for m in VR.finditer(s):
        if m.group(1) is not None: out.append(list(range(int(m.group(1)), int(m.group(2)) + 1)))
        else: out.append([int(m.group(3))])
    return out
def classify(t):
    t0 = t.split(';')[0].strip()
    if not t0 or t0.endswith(':') or t0.startswith('.'): return ('none', [], [])
    op = t0.split()[0]
    rest = t0[len(op):]
    ops = vregs(rest)
    flat = lambda L: [r for x in L for r in x]
    if op.startswith('ds_read') or op.startswith('ds_bpermute') or op.startswith('ds_swizzle'): return ('dsr', ops[0], flat(ops[1:]))
    if op.startswith('ds_'): return ('dsw', [], flat(ops))
    if op.startswith('buffer_load') or op.startswith('global_load'):
        if ' lds' in t0: return ('vmem', [], flat(ops))
        return ('vmeml', ops[0], flat(ops[1:]))
    if op.startswith('buffer_') or op.startswith('global_'): return ('vmem', [], flat(ops))
    if op.startswith('v_mfma'): return ('mfma', ops[0], flat(ops[1:]))
    if op.startswith('v_cmp') or op.startswith('v_readfirstlane') or op.startswith('v_readlane'): return ('valu', [], flat(ops))
    if op.startswith('v_fmac') or op.startswith('v_dot2c') or 'swap' in op: return ('valu', flat(ops) if 'swap' in op else ops[0], flat(ops))
    if op.startswith('v_'): return ('valu', ops[0] if ops else [], flat(ops[1:]))
    return ('salu', [], [])
def auto_lgkm(instrs):
    out = []; q = []
    for t in instrs:
        cls, w, r = classify(t)
        m = re.search(r'lgkmcnt\((\d+)\)', t)
        if t.strip().startswith('s_waitcnt') and m:
            n = int(m.group(1)); q = q[len(q) - n:] if n < len(q) else q
            if n == 0: q = []
            out.append(t); continue
        touched = set(r) | set(w)
        idx = -1
        for i, d in enumerate(q):
            if d and (d & touched): idx = i
        if idx >= 0:
            n = len(q) - 1 - idx
            n = min(n, 15)
            out.append(f"s_waitcnt lgkmcnt({n})")
            q = q[len(q) - n:] if n > 0 else []
        out.append(t)
        if cls == 'dsr': q.append(set(w))
        elif cls == 'dsw': q.append(None)
    return out
def interleave(a, b, pattern=None):
    out = []; ia = ib = 0; na, nb = len(a), len(b)
    while ia < na or ib < nb:
        if ib >= nb or (ia < na and ia * nb <= ib * na): out.append(a[ia]); ia += 1
        else: out.append(b[ib]); ib += 1
    return out
class Regs:
    def __init__(self, start=0): self.n = start; self.names = {}
    def alloc(self, name, cnt=1, align=1):
        self.n = (self.n + align - 1) // align * align
        r = self.n; self.n += cnt; self.names[name] = r; return r
def v(r, n=1): return f"v{r}" if n == 1 else f"v[{r}:{r+n-1}]"
def s(r, n=1): return f"s{r}" if n == 1 else f"s[{r}:{r+n-1}]"

def fix_hazards(instrs):
    out = []; mw = {}; vw = {}; pos = 0
    for t in instrs:
        cls, w, r = classify(t)
        if cls == 'none': out.append(t); continue
        need = 0
        if cls == 'mfma':
            ops = vregs(t.split(None, 1)[1]); ab = set(ops[1]) | set(ops[2])
            for x in ab:
                if x in mw: need = max(need, 8 - (pos - mw[x] - 1))
            for x in set(r):
                if x in vw: need = max(need, 2 - (pos - vw[x] - 1))
        else:
            for x in set(r) | set(w):
                if x in mw: need = max(need, 8 - (pos - mw[x] - 1))
        if need > 0:
            out.append(f"s_nop {need-1}"); pos += need
        out.append(t)
        m = re.match(r"\s*s_nop\s+(\d+)", t)
        if cls == 'mfma':
            for x in w: mw[x] = pos
        elif cls == 'valu':
            for x in w: vw[x] = pos
        pos += (int(m.group(1)) + 1) if m else 1
    return out
```

```python
import sys
from asmlib import *
opts = dict(a.split("=") for a in sys.argv[1:] if "=" in a)
XNT = opts.get("xnt", "1") == "1"
ROT = opts.get("rot", "1") == "1"
ROT2 = opts.get("rot", "1") == "2"
STAMP = opts.get("stamp", "0") == "1"
ONT = opts.get("ont", "1") == "1"
PROF = opts.get("prof", "0") in ("1", "2")
DENS = int(opts.get("dens", "3"))
PR2 = int(opts.get("pr2", "1")); PRL = int(opts.get("prl", "2")); PRM = int(opts.get("prm", "3")); PR1 = int(opts.get("pr1", "2")); LOW = int(opts.get("low", "0")); PRS = int(opts.get("prs", "3")); PH = opts.get("ph", "3"); LATE = int(opts.get("late", "0"))
WPOS = [float(x) for x in opts.get("wpos", "0.0,0.5").split(",")]
VPM = int(opts.get("vpm", "2"))
TC = 3
MFIRST = opts.get("mfirst", "1") == "1"
W2M = opts.get("w2m", "1") == "1"
if PROF: STAMP = True
NAME = "standalone__layernorm_linear__sampling_kernel"
NWAVES = 12
WS = 24576; NWS = 5; XS = 16384; XB = 131072
GF32 = NWS * WS; XE = GF32 + 2304; GBF = XE + 1152; BBF = GBF + 1152; STATS = BBF + 1152; XP = STATS + 896
assert XP + 64 <= XB
LDSB = XB + XS + 12288
RS = int(opts.get("rs", "408"))
out = []
A = out.append; a = A
def x_prev_label_m(new): return any(y == "L_mloop:" for y in new[-4:])
hdr = open("standalone__layernorm_linear__sampling.s.ref").read().split("; Override launch")[0]
A(hdr.rstrip())
A(f"; @launch grid=(256,1,1) block=({NWAVES*64},1,1) lds={LDSB}")
A('.amdgcn_target "amdgcn-amd-amdhsa--gfx950"')
A(".text"); A(f".globl {NAME}"); A(".p2align 8"); A(f".type {NAME},@function"); A(f"{NAME}:")
SX, SW, SG, SB, SO = 16, 20, 24, 28, 32
sWave, sRb, sCs, sCg = 36, 37, 38, 39
cc = [40, 41, 42]
cA, cB, cC = cc
sI = 43
sWb = 44; sOob = 45
t0, t1, t2, t3 = 48, 49, 51, 52
sMask = 50
sSo = 58; sM = 59; sG0 = 47; sSoW = 57
SD = 60
vLane = 1; vT = 2; T = [vT + i for i in range(8)]
vPr = 10
L_ = v(vLane)
def stamp(idx):
    if not PROF: return []
    return ["s_memtime s[70:71]", "s_waitcnt lgkmcnt(0)", f"v_writelane_b32 {v(vPr)}, s70, {idx}"]
BAR = ["s_waitcnt lgkmcnt(0)", "s_barrier"]

if STAMP: A("s_memrealtime s[64:65]")
A("s_cmp_ge_u32 s2, 255"); A("s_cbranch_scc1 L_end")
A("s_load_dwordx8 s[4:11], s[0:1], 0")
A("s_load_dwordx2 s[12:13], s[0:1], 32")
if STAMP: A(f"s_load_dwordx2 s[14:15], s[0:1], 48")
A(f"v_lshrrev_b32 {v(vT)}, 6, v0"); A(f"v_and_b32 {v(vLane)}, 63, v0")
A(f"s_and_b32 {s(t0)}, s2, 7"); A(f"s_lshl_b32 {s(t0)}, {s(t0)}, 5"); A(f"s_lshr_b32 {s(t1)}, s2, 3"); A(f"s_add_u32 {s(t0)}, {s(t0)}, {s(t1)}")
A(f"v_readfirstlane_b32 {s(sWave)}, {v(vT)}")
A(f"s_mul_i32 {s(sRb)}, {s(t0)}, 21846"); A(f"s_lshr_b32 {s(sRb)}, {s(sRb)}, 16")
A(f"s_mul_i32 {s(t1)}, {s(sRb)}, 3"); A(f"s_sub_u32 {s(sCs)}, {s(t0)}, {s(t1)}")
A(f"s_and_b32 {s(sCg)}, {s(sWave)}, 3")
if MFIRST: A(f"s_add_u32 {s(sWave)}, {s(sWave)}, 8"); A(f"s_cmp_ge_u32 {s(sWave)}, 12"); A(f"s_cselect_b32 {s(t2)}, 12, 0"); A(f"s_sub_u32 {s(sWave)}, {s(sWave)}, {s(t2)}")
A(f"s_mov_b32 {s(sMask)}, 0xffff0000")
CPF = int(opts.get("cpf", "0"))
if CPF:
    A(f"s_cmp_lg_u32 {s(sWave)}, {CPF}"); A("s_cbranch_scc1 L_nocpf")
    A("s_getpc_b64 s[54:55]"); A("s_and_b32 s54, s54, 0xffffff00")
    A(f"v_lshlrev_b32 {v(T[1])}, 7, {L_}")
    A(f"global_load_dword v166, {v(T[1])}, s[54:55]")
    A(f"v_add_u32 {v(T[1])}, 8192, {v(T[1])}"); A("v_cmp_gt_u32 vcc, 44, v1"); A("s_and_saveexec_b64 s[56:57], vcc")
    A(f"global_load_dword v167, {v(T[1])}, s[54:55]"); A("s_mov_b64 exec, -1")
    A("s_waitcnt vmcnt(0)") if False else None
    A("L_nocpf:")
if ROT:
    A(f"s_mul_i32 {s(t0)}, {s(sRb)}, 21846"); A(f"s_lshr_b32 {s(t0)}, {s(t0)}, 16")
    A(f"s_mul_i32 {s(t1)}, {s(t0)}, 3"); A(f"s_sub_u32 {s(t1)}, {s(sRb)}, {s(t1)}")
    A(f"s_mul_i32 {s(t2)}, {s(t0)}, 21846"); A(f"s_lshr_b32 {s(t2)}, {s(t2)}, 16"); A(f"s_mul_i32 {s(t2)}, {s(t2)}, 3"); A(f"s_sub_u32 {s(t0)}, {s(t0)}, {s(t2)}")
    A(f"s_mul_i32 {s(t0)}, {s(t0)}, 3")
    A(f"s_add_u32 {s(t1)}, {s(t1)}, {s(sCs)}")
    for k, cr in enumerate(cc):
        if k: A(f"s_add_u32 {s(t1)}, {s(t1)}, 1")
        A(f"s_cmp_ge_u32 {s(t1)}, 3"); A(f"s_cselect_b32 {s(t2)}, 3, 0"); A(f"s_sub_u32 {s(t1)}, {s(t1)}, {s(t2)}")
        A(f"s_add_u32 {s(cr)}, {s(t0)}, {s(t1)}")
elif ROT2:
    A(f"s_mov_b32 {s(cA)}, {s(sCs)}"); A(f"s_add_u32 {s(cB)}, {s(sCs)}, 1"); A(f"s_cmp_ge_u32 {s(cB)}, 3"); A(f"s_cselect_b32 {s(cB)}, 0, {s(cB)}")
    A(f"s_add_u32 {s(cC)}, {s(cB)}, 1"); A(f"s_cmp_ge_u32 {s(cC)}, 3"); A(f"s_cselect_b32 {s(cC)}, 0, {s(cC)}")
else:
    A(f"s_mov_b32 {s(cA)}, 0"); A(f"s_mov_b32 {s(cB)}, 1"); A(f"s_mov_b32 {s(cC)}, 2")
def rot_c():
    return [f"s_add_u32 {s(t2)}, {s(cA)}, 3", f"s_cmp_ge_u32 {s(t2)}, 9", f"s_cselect_b32 {s(t1)}, 9, 0", f"s_sub_u32 {s(t2)}, {s(t2)}, {s(t1)}",
            f"s_mov_b32 {s(cA)}, {s(cB)}", f"s_mov_b32 {s(cB)}, {s(cC)}", f"s_mov_b32 {s(cC)}, {s(t2)}"]
def adv3(c):
    return [f"s_add_u32 {s(c)}, {s(c)}, 3", f"s_cmp_ge_u32 {s(c)}, 9", f"s_cselect_b32 {s(t1)}, 9, 0", f"s_sub_u32 {s(c)}, {s(c)}, {s(t1)}"]
def wrap(reg, inc, lim, base=0):
    return [f"s_add_u32 {s(reg)}, {s(reg)}, {inc}", f"s_cmp_ge_u32 {s(reg)}, {lim}", f"s_cselect_b32 {s(reg)}, {base}, {s(reg)}"]
def srd(d):
    r, p, nb = d
    return [f"s_mov_b32 {s(r)}, {s(p)}", f"s_mov_b32 {s(r+1)}, {s(p+1)}", f"s_mov_b32 {s(r+2)}, {nb}", f"s_mov_b32 {s(r+3)}, 0x20000"]
def srds(lst):
    o = ["s_waitcnt lgkmcnt(0)"] + stamp(0)
    for d in lst: o += srd(d)
    return o
def sdbg():
    return [f"s_mov_b32 {s(SD)}, s14", f"s_mov_b32 {s(SD+1)}, s15", f"s_mov_b32 {s(SD+2)}, 0x100000", f"s_mov_b32 {s(SD+3)}, 0x20000"] if STAMP else []
dX, dG, dB, dW, dO = (SX, 4, 9437184), (SG, 6, 1152), (SB, 8, 1152), (SW, 10, 663552), (SO, 12, 9437184)
xnt = " nt" if XNT else ""
ont = {"1": " nt", "0": "", "2": " sc0 sc1 nt", "3": " sc1 nt"}[opts.get("ont", "1")]
A(f"s_cmp_ge_u32 {s(sWave)}, 8"); A("s_cbranch_scc1 L_mfma")

def prep_valu(raw, st, G, tm):
    p1 = []; p2 = []
    for d in range(4):
        lo, hi = tm + 2 * d, tm + 2 * d + 1
        p1 += [f"v_lshlrev_b32 {v(lo)}, 16, {v(raw+d)}", f"v_and_b32 {v(hi)}, {s(sMask)}, {v(raw+d)}",
               f"v_add_f32 {v(st)}, {v(st)}, {v(lo)}", f"v_add_f32 {v(st+1)}, {v(st+1)}, {v(hi)}",
               f"v_fmac_f32 {v(st+2)}, {v(lo)}, {v(lo)}", f"v_fmac_f32 {v(st+3)}, {v(hi)}, {v(hi)}"]
        p2 += [f"v_mul_f32 {v(lo)}, {v(lo)}, {v(G+2*d)}", f"v_mul_f32 {v(hi)}, {v(hi)}, {v(G+2*d+1)}", f"v_cvt_pk_bf16_f32 {v(tm+8+d)}, {v(lo)}, {v(hi)}"]
    return p1, p2

R = Regs(11)
vWd = R.alloc("wd", 6); vXd = R.alloc("xd"); vPB_ = R.alloc("pb"); vP = R.alloc("p")
vSa = R.alloc("sa", 6)
vGB = R.alloc("gb"); vG = R.alloc("g")
vSt = R.alloc("stats", 8, 4); vGq = R.alloc("gq", 8, 4); vTm = R.alloc("tmp", 24, 4); vY = R.alloc("y", 4, 2); vPk = R.alloc("pk", 8, 4); vRaw = R.alloc("raw", 24, 4); vRes = R.alloc("res", 4, 2); vG0 = R.alloc("g0", 8, 4); vXa = R.alloc("xa", 2)
assert vSa == 20
a(f"s_lshl_b32 {s(t0)}, {s(sCg)}, 1"); a(f"s_add_u32 {s(t1)}, {s(sCg)}, 8"); a(f"s_cmp_ge_u32 {s(sWave)}, 4"); a(f"s_cselect_b32 {s(sG0)}, {s(t0)}, {s(t1)}")
a(f"v_lshrrev_b32 {v(T[0])}, 3, {L_}"); a(f"v_and_b32 {v(T[0])}, 2, {v(T[0])}"); a(f"v_and_b32 {v(T[1])}, 3, {L_}"); a(f"v_xor_b32 {v(T[0])}, {v(T[0])}, {v(T[1])}")
a(f"v_lshrrev_b32 {v(T[1])}, 5, {L_}"); a(f"v_lshl_add_u32 {v(T[0])}, {v(T[1])}, 2, {v(T[0])}"); a(f"v_bfe_u32 {v(T[1])}, {L_}, 2, 3"); a(f"v_lshlrev_b32 {v(T[3])}, 4, {v(T[0])}")
a(f"s_mul_i32 {s(t0)}, {s(sRb)}, 12"); a(f"s_add_u32 {s(t0)}, {s(t0)}, {s(sG0)}"); a(f"s_mul_i32 {s(t0)}, {s(t0)}, 9216")
a(f"v_mul_u32_u24 {v(T[2])}, 1152, {v(T[1])}"); a(f"v_add3_u32 {v(vXd)}, {v(T[2])}, {v(T[3])}, {s(t0)}")
a(f"s_mov_b32 {s(sOob)}, 0")
a(f"s_cmp_ge_u32 {s(sWave)}, 4"); a("s_cbranch_scc1 L_p2")
a(f"s_cmp_ge_u32 {s(sWave)}, 2"); a("s_cbranch_scc1 L_p1")

def xload(ng, buf, creg, tag, oob=False):
    o = [f"s_lshl_b32 {s(sSo)}, {s(creg)}, 7"]
    if oob: o.append(f"s_or_b32 {s(sSo)}, {s(sSo)}, {s(sOob)}")
    for g in range(ng):
        if g: o.append(f"s_add_u32 {s(sSo)}, {s(sSo)}, 9216")
        o.append(f"buffer_load_dwordx4 {v(vRaw+(buf*2+g)*4,4)}, {v(vXd)}, {s(SX,4)}, {s(sSo)} offen{xnt} ;#{tag}")
    return o
def wdma_units(creg, tag, oob=False):
    u = []
    for n in range(12):
        pre = []
        if n == 0:
            pre = [f"s_mul_i32 {s(sSoW)}, {s(creg)}, 73728"] + ([f"s_or_b32 {s(sSoW)}, {s(sSoW)}, {s(sOob)}"] if oob else [])
        elif n == 6: pre = [f"s_add_u32 {s(sSoW)}, {s(sSoW)}, {16*1152}"]
        u.append(pre + [f"s_add_u32 m0, {s(sM)}, {n*1024}", "DELAY", f"buffer_load_dwordx4 {v(vWd+n%6)}, {s(SW,4)}, {s(sSoW)} offen lds ;#{tag}"])
    u[-1] += [f"s_add_u32 {s(sM)}, {s(sM)}, {WS}", f"s_cmp_ge_u32 {s(sM)}, {NWS*WS}", f"s_cselect_b32 s56, {NWS*WS}, 0", f"s_sub_u32 {s(sM)}, {s(sM)}, s56"]
    return u
def weave(valu, units, dens=None):
    o = []; n = len(valu); k = len(units); iv = 0
    for j, u in enumerate(units):
        tgt = min(n, (n * j) // k if dens is None else j * dens)
        o += valu[iv:tgt]; iv = max(iv, tgt)
        for x in u:
            if x == "DELAY":
                if iv < n and valu[iv].startswith("v_"): o.append(valu[iv]); iv += 1
                else: o.append("s_nop 0")
            else: o.append(x)
    o += valu[iv:]
    return o
def prep_setup():
    o = []; a = o.append
    a(f"v_lshlrev_b32 {v(vGB)}, 5, {v(T[0])}"); a(f"v_add_u32 {v(vGB)}, {GF32}, {v(vGB)}")
    a(f"s_lshl_b32 {s(t0)}, {s(sG0)}, 10"); a(f"s_add_u32 {s(t0)}, {s(t0)}, {XB}"); a(f"v_lshlrev_b32 {v(T[2])}, 4, {L_}"); a(f"v_add_u32 {v(vP)}, {s(t0)}, {v(T[2])}")
    for i in range(8): a(f"v_mov_b32 {v(vSt+i)}, 0")
    return o
def store_setup():
    o = []; a = o.append
    a(f"s_mul_i32 {s(t0)}, {s(sRb)}, {96*1152}"); a(f"s_mul_i32 {s(t1)}, {s(sCs)}, 384"); a(f"s_add_u32 {s(t0)}, {s(t0)}, {s(t1)}")
    a(f"s_mul_i32 {s(t3)}, {s(sWave)}, 9216"); a(f"s_add_u32 {s(t0)}, {s(t0)}, {s(t3)}"); a(f"s_mul_i32 {s(t3)}, {s(sWave)}, {8*RS}")
    for n in range(3):
        a(f"v_add_u32 {v(T[4])}, {n*64}, {L_}")
        a(f"v_mul_u32_u24 {v(T[5])}, 2731, {v(T[4])}"); a(f"v_lshrrev_b32 {v(T[5])}, 16, {v(T[5])}")
        a(f"v_mul_u32_u24 {v(T[6])}, 24, {v(T[5])}"); a(f"v_sub_u32 {v(T[4])}, {v(T[4])}, {v(T[6])}"); a(f"v_lshlrev_b32 {v(T[4])}, 4, {v(T[4])}")
        a(f"v_mul_u32_u24 {v(T[6])}, {RS}, {v(T[5])}"); a(f"v_add3_u32 v{20+n}, {v(T[6])}, {v(T[4])}, {s(t3)}")
        a(f"v_mul_u32_u24 {v(T[6])}, 1152, {v(T[5])}"); a(f"v_add3_u32 v{23+n}, {v(T[6])}, {v(T[4])}, {s(t0)}")
    a(f"v_lshlrev_b32 {v(T[4])}, 4, {L_}"); a(f"v_add_u32 {v(vXa)}, {96*RS}, {v(T[4])}")
    a(f"s_add_u32 {s(t2)}, {s(sRb)}, 8160"); a(f"s_mul_i32 {s(t2)}, {s(t2)}, 1152"); a(f"s_add_u32 {s(t2)}, {s(t2)}, {s(t1)}")
    a(f"v_add_u32 {v(T[4])}, {s(t2)}, {v(T[4])}"); a(f"v_mov_b32 {v(T[5])}, 0x40000000"); a(f"v_cmp_gt_u32 vcc, 24, {L_}"); a("s_nop 1"); a(f"v_cndmask_b32 {v(vXa+1)}, {v(T[5])}, {v(T[4])}, vcc")
    return o
def gload(creg, dst, tag):
    return [f"s_lshl_b32 {s(t0)}, {s(creg)}, 7", f"buffer_load_dwordx4 {v(dst,4)}, {v(T[3])}, {s(SG,4)}, {s(t0)} offen ;#{tag}"]
def gunpack(src):
    o = []
    for d in range(4): o += [f"v_lshlrev_b32 {v(vGq+2*d)}, 16, {v(src+d)}", f"v_and_b32 {v(vGq+2*d+1)}, {s(sMask)}, {v(src+d)}"]
    return o
def parts(ng, buf):
    un = []; sc = []; stt = []
    for g in range(ng):
        raw = vRaw + (buf * 2 + g) * 4; st = vSt + 4 * g; tm = vTm + 8 * g; y = vY; pk = vPk + 4 * g
        for d in range(4):
            lo, hi = tm + 2 * d, tm + 2 * d + 1
            un += [f"v_lshlrev_b32 {v(lo)}, 16, {v(raw+d)}", f"v_and_b32 {v(hi)}, {s(sMask)}, {v(raw+d)}"]
            sc += [f"v_mul_f32 {v(y+2*(d%2))}, {v(lo)}, {v(vGq+2*d)}", f"v_mul_f32 {v(y+2*(d%2)+1)}, {v(hi)}, {v(vGq+2*d+1)}", f"v_cvt_pk_bf16_f32 {v(pk+d)}, {v(y+2*(d%2))}, {v(y+2*(d%2)+1)}"]
            stt += [f"v_add_f32 {v(st)}, {v(st)}, {v(lo)}", f"v_add_f32 {v(st+1)}, {v(st+1)}, {v(hi)}", f"v_fmac_f32 {v(st+2)}, {v(lo)}, {v(lo)}", f"v_fmac_f32 {v(st+3)}, {v(hi)}, {v(hi)}"]
        sc.append(f"ds_write_b128 {v(vP)}, {v(pk,4)} offset:{g*1024}")
    return un, sc, stt
def resolve_vm(seq):
    q = []; res = {}
    for x in seq:
        if x.startswith("WAITVM"):
            tags, wid = x[7:].split("@"); tags = tags.split(",")
            last = max([i for i, t in enumerate(q) if t in tags], default=-1)
            n = len(q) - 1 - last if last >= 0 else 63
            res[wid] = min(res.get(wid, 63), n)
        elif ";#" in x: q.append(x.split(";#")[1])
    return res
def interval(role, j, wid, loop):
    ng = 2 if role == "P2" else 1
    nW = 12 if role == "PL" else 0
    hi = {"PL": PRL, "P2": PR2, "P1": PR1}[role]
    k = j % 3; kn = (k + 1) % 3; cn = cc[kn]; cw = cc[k]
    un, sc, stt = parts(ng, k)
    gnext = [f"s_lshl_b32 {s(t0)}, {s(cn)}, 8", f"v_add_u32 {v(vG)}, {s(t0)}, {v(vGB)}", f"ds_read_b128 {v(vGq,4)}, {v(vG)}", f"ds_read_b128 {v(vGq+4,4)}, {v(vG)} offset:16"]
    if j == 8: gnext = []
    flip = [f"v_xor_b32 {v(vP)}, {XS}, {v(vP)}"]
    o = [f"s_setprio {hi}"] if hi else []
    if j == 0:
        return o + [f"WAITVM x0,g0@{wid}"] + gunpack(vG0) + un + sc + flip + BAR
    moreX = loop or j + 3 <= 8
    moreW = nW and (loop or j + 2 <= 8)
    rl = (adv3(cw) + xload(ng, k, cw, f"x{j+3}", oob=(loop and k in (0, 1)))) if moreX else []
    pre = []
    if j == 1:
        _, _, st0 = parts(ng, 0)
        pre = xload(ng, 2, cC, "x2") + adv3(cA) + xload(ng, 0, cA, "x3")
        pre += (weave(st0, wdma_units(cC, "W2")) if (nW and not W2M) else st0) + [f"WAITVM g1@{wid}g"] + gunpack(vG0 + 4)
    o += pre + [f"WAITVM x{j}@{wid}"]
    if moreW:
        units = wdma_units(cc[(k + 2) % 3], f"W{j+2}", oob=(loop and k == 1))
        crit = un + (["\n".join(rl)] if rl else []) + sc + gnext
        nb = min(12, (len(crit) + DENS - 1) // DENS)
        o += weave(crit, units[:nb], DENS)
        tail = weave(stt, units[nb:]) if nb < 12 else stt
    else:
        o += un + rl + sc + gnext
        tail = stt
    if j == 8: return o + ["s_waitcnt vmcnt(0)"] + BAR + [f"s_setprio {PRS}"] + tail
    o += ([f"s_setprio {LOW}"] if (hi != LOW and not nW) else []) + flip + tail
    if j < 8: o += ([f"WAITVM W{j}@{wid}w"] if nW else []) + BAR
    return o
def prep_role(role):
    ng = 2 if role == "P2" else 1
    nW = 12 if role == "PL" else 0
    pro = gload(cA, vG0, "g0") + xload(ng, 0, cA, "x0") + prep_setup() + xload(ng, 1, cB, "x1") + gload(cB, vG0 + 4, "g1")
    if nW: pro += srd(dW) + waddr(vWd, f"s_mul_i32 {s(t1)}, {s(sWave)}, {32*1152}") + [f"s_mul_i32 {s(sM)}, {s(sWave)}, 12288", f"s_add_u32 {s(sM)}, {s(sM)}, {(3 if W2M else 2)*WS}"]
    pro += store_setup() + stamp(1)
    i0 = interval(role, 0, f"{role}0", False); i1 = interval(role, 1, f"{role}1", False)
    body = lambda base: [x for j in (base, base + 1, base + 2) for x in interval(role, j, f"{role}L{j%3}", True)]
    i8 = interval(role, 8, f"{role}8", False)
    dyn = pro + i0 + i1 + body(2) + body(5) + i8
    res = resolve_vm(dyn)
    code = pro + i0 + stamp(2) + i1 + stamp(3) + [f"L_loop{role}:"] + body(2)
    code += [f"s_cmp_eq_u32 {s(sOob)}, 0", f"s_mov_b32 {s(sOob)}, 0x40000000", f"s_cbranch_scc1 L_loop{role}"]
    code += i8 + ["s_branch L_pstats"]
    return [(f"s_waitcnt vmcnt({res[x.split('@')[1]]})" if x.startswith("WAITVM") else x.split(" ;#")[0]) for x in code]
def waddr(dst, rowoff):
    o = []; a = o.append
    a(f"s_mul_i32 {s(t0)}, {s(sCs)}, 384"); a(rowoff); a(f"s_add_u32 {s(t0)}, {s(t0)}, {s(t1)}")
    for n in range(3):
        a(f"v_add_u32 {v(T[4])}, {n*64}, {L_}")
        a(f"v_mul_u32_u24 {v(T[5])}, 2731, {v(T[4])}"); a(f"v_lshrrev_b32 {v(T[5])}, 16, {v(T[5])}")
        a(f"v_mul_u32_u24 {v(T[6])}, 24, {v(T[5])}"); a(f"v_sub_u32 {v(T[4])}, {v(T[4])}, {v(T[6])}")
        a(f"v_and_b32 {v(T[6])}, 2, {v(T[5])}"); a(f"v_xor_b32 {v(T[4])}, {v(T[4])}, {v(T[6])}")
        a(f"v_mul_u32_u24 {v(T[5])}, 1152, {v(T[5])}"); a(f"v_lshl_add_u32 {v(T[4])}, {v(T[4])}, 4, {v(T[5])}"); a(f"v_add_u32 {v(dst+n)}, {s(t0)}, {v(T[4])}")
        a(f"v_xor_b32 {v(T[4])}, 64, {v(dst+n)}"); a(f"v_add_u32 {v(dst+n+3)}, 9216, {v(T[4])}")
    return o
if PRL: a(f"s_setprio {PRL}")
out += srds([dX, dG])
out += prep_role("PL")
a("L_p1:")
out += srds([dX, dG])
out += prep_role("P1")
a("L_p2:")
if PR2: a(f"s_setprio {PR2}")
out += srds([dX, dG])
out += prep_role("P2")[:-1]
a("L_pstats:")
a(f"s_lshl_b32 {s(t0)}, {s(sG0)}, 6"); a(f"s_add_u32 {s(t0)}, {s(t0)}, {STATS}")
a(f"v_bfe_u32 {v(T[2])}, {L_}, 2, 4"); a(f"v_lshlrev_b32 {v(T[2])}, 3, {v(T[2])}"); a(f"v_add_u32 {v(T[2])}, {s(t0)}, {v(T[2])}")
a(f"s_cmp_ge_u32 {s(sWave)}, 4"); a("s_cbranch_scc1 L_ps2")
a(f"v_and_b32 {v(T[0])}, 3, {L_}"); a(f"v_lshrrev_b32 {v(T[1])}, 5, {L_}"); a(f"v_lshl_add_u32 {v(T[0])}, {v(T[1])}, 2, {v(T[0])}"); a(f"v_lshlrev_b32 {v(T[0])}, 3, {v(T[0])}")
a(f"v_add_u32 {v(T[0])}, {XP}, {v(T[0])}")
a(f"ds_read_b64 {v(vGq,2)}, {v(T[0])}"); a(f"v_mov_b32 {v(T[1])}, {STATS + 96*8}"); a(f"v_cmp_gt_u32 vcc, 32, {L_}"); a("s_waitcnt lgkmcnt(0)")
a(f"v_mov_b32 {v(vSt+4)}, {v(vGq)}"); a(f"v_mov_b32 {v(vSt+6)}, {v(vGq+1)}"); a(f"v_cndmask_b32 {v(T[2])}, {v(T[1])}, {v(T[2])}, vcc")
a("L_ps2:")
p, q, r, w = vSt, vSt + 4, vSt + 2, vSt + 6
a(f"v_add_f32 {v(p)}, {v(p)}, {v(p+1)}"); a(f"v_add_f32 {v(q)}, {v(q)}, {v(q+1)}"); a(f"v_add_f32 {v(r)}, {v(r)}, {v(r+1)}"); a(f"v_add_f32 {v(w)}, {v(w)}, {v(w+1)}"); a("s_nop 1")
a(f"v_permlane32_swap_b32 {v(p)}, {v(q)}"); a(f"v_permlane32_swap_b32 {v(r)}, {v(w)}"); a("s_nop 1")
a(f"v_add_f32 {v(p)}, {v(p)}, {v(q)}"); a(f"v_add_f32 {v(r)}, {v(r)}, {v(w)}"); a("s_nop 1")
for qp in ("[1,0,3,2]", "[2,3,0,1]"):
    a(f"v_add_f32_dpp {v(p)}, {v(p)}, {v(p)} quad_perm:{qp} row_mask:0xf bank_mask:0xf"); a(f"v_add_f32_dpp {v(r)}, {v(r)}, {v(r)} quad_perm:{qp} row_mask:0xf bank_mask:0xf"); a("s_nop 1")
a(f"v_mul_f32 {v(p)}, 0x3ae38e39, {v(p)}"); a(f"v_mul_f32 {v(r)}, 0x3ae38e39, {v(r)}")
a(f"v_fma_f32 {v(r)}, -{v(p)}, {v(p)}, {v(r)}"); a(f"v_max_f32 {v(r)}, 0, {v(r)}")
a(f"v_cvt_pk_bf16_f32 {v(q)}, {v(p)}, {v(r)}"); a(f"v_and_b32 {v(r)}, {s(sMask)}, {v(q)}"); a(f"v_lshlrev_b32 {v(p)}, 16, {v(q)}")
a(f"v_add_f32 {v(r)}, 0x3727c5ac, {v(r)}"); a(f"v_cvt_pk_bf16_f32 {v(q)}, {v(r)}, {v(r)}"); a(f"v_and_b32 {v(r)}, {s(sMask)}, {v(q)}")
a(f"v_sqrt_f32 {v(r)}, {v(r)}"); a("s_nop 0"); a(f"v_cvt_pk_bf16_f32 {v(q)}, {v(r)}, {v(r)}"); a(f"v_and_b32 {v(r)}, {s(sMask)}, {v(q)}")
a(f"v_rcp_f32 {v(vRes)}, {v(r)}"); a("s_nop 0"); a(f"v_mul_f32_e64 {v(vRes+1)}, -{v(p)}, {v(vRes)}")
a(f"ds_write_b64 {v(T[2])}, {v(vRes,2)}")
out += stamp(19)
out += BAR
a("s_setprio 0")
out += srd(dO) + sdbg()
a(f"s_mov_b32 {s(sSo)}, {8*9216}")
a("s_barrier")
out += stamp(22)
a(f"s_cmp_ge_u32 {s(sWave)}, 4"); a("s_cbranch_scc1 L_stB")
st = []
for k in range(3): st.append(f"ds_read2_b64 {v(vTm+4*k,4)}, v{20+k} offset0:0 offset1:1")
for k in range(3): st.append(f"buffer_store_dwordx4 {v(vTm+4*k,4)}, v{23+k}, {s(SO,4)}, 0 offen{ont}")
out += auto_lgkm(st)
for k in range(3): a(f"v_add_u32 v{20+k}, {64*RS}, v{20+k}")
a("s_barrier"); a("s_barrier")
out += stamp(23)
st = []
for k in range(3): st.append(f"ds_read2_b64 {v(vTm+12+4*k,4)}, v{20+k} offset0:0 offset1:1")
for k in range(3): st.append(f"buffer_store_dwordx4 {v(vTm+12+4*k,4)}, v{23+k}, {s(SO,4)}, {s(sSo)} offen{ont}")
out += auto_lgkm(st)
a("s_branch L_fin")
a("L_stB:")
a(f"s_cmp_eq_u32 {s(sWave)}, 4"); a("s_cbranch_scc0 L_st3")
a(f"ds_read2_b64 {v(vTm+12,4)}, {v(vXa)} offset0:0 offset1:1"); a("s_waitcnt lgkmcnt(0)"); a(f"buffer_store_dwordx4 {v(vTm+12,4)}, {v(vXa+1)}, {s(SO,4)}, 0 offen{ont}")
a("L_st3:")
a("s_barrier")
st = []
for k in range(3): st.append(f"ds_read2_b64 {v(vTm+4*k,4)}, v{20+k} offset0:0 offset1:1")
for k in range(3): st.append(f"buffer_store_dwordx4 {v(vTm+4*k,4)}, v{23+k}, {s(SO,4)}, 0 offen{ont}")
out += auto_lgkm(st)
a("s_barrier")
out += stamp(23)
a("s_branch L_fin")

a("L_mfma:")
if PRM: a(f"s_setprio {PRM}")
vWrB, vWr, vXr, vSB, vS = 11, 12, 13, 14, 15
vAcc = 16; vWF = 100; vXF = 124; vEe = 152; vU = 164; NV = 168
vE = vAcc
vMW = vEe
vE = vXF - 24
a(f"v_lshlrev_b32 {v(T[3])}, 4, {L_}")
a(f"s_mul_i32 {s(t0)}, {s(sCg)}, 576"); a(f"v_add_u32 {v(T[6])}, {s(t0)}, {v(T[3])}")
a(f"v_mov_b32 {v(T[5])}, 0x40000000"); a(f"v_cmp_gt_u32 vcc, 36, {L_}"); a(f"s_add_u32 {s(t3)}, {s(sRb)}, 8160"); a(f"s_mul_i32 {s(t3)}, {s(t3)}, 1152"); a(f"v_cndmask_b32 {v(vE+40)}, {v(T[5])}, {v(T[6])}, vcc")
out += waddr(vMW, f"s_mul_i32 {s(t1)}, {s(sCg)}, {16*1152}")
out += srds([dX, dG, dB, dW])
a(f"s_cmp_ge_u32 {s(sCg)}, 2"); a("s_cbranch_scc1 L_mt")
a(f"buffer_load_dwordx4 {v(vE,4)}, {v(vE+40)}, {s(SG,4)}, 0 offen")
a(f"buffer_load_dwordx4 {v(vE+4,4)}, {v(vE+40)}, {s(SX,4)}, {s(t3)} offen")
a("s_branch L_m1")
a("L_mt:")
a(f"s_cmp_eq_u32 {s(sCg)}, 2"); a("s_cbranch_scc0 L_mtb")
a(f"s_mov_b32 m0, {GBF}"); a("s_nop 0"); a(f"buffer_load_dwordx4 {v(T[3])}, {s(SG,4)}, 0 offen lds")
a("s_mov_b64 exec, 0xff"); a(f"buffer_load_dwordx4 {v(T[3])}, {s(SG,4)}, 0 offen offset:1024 lds"); a("s_mov_b64 exec, -1")
a("s_branch L_m1")
a("L_mtb:")
a(f"s_mov_b32 m0, {BBF}"); a("s_nop 0"); a(f"buffer_load_dwordx4 {v(T[3])}, {s(SB,4)}, 0 offen lds")
a("s_mov_b64 exec, 0xff"); a(f"buffer_load_dwordx4 {v(T[3])}, {s(SB,4)}, 0 offen offset:1024 lds"); a("s_mov_b64 exec, -1")
a("L_m1:")
a(f"s_mul_i32 {s(sM)}, {s(sCg)}, 6144")
def mdma(ci, cr):
    o = [f"s_mul_i32 {s(sSoW)}, {s(cr)}, 73728"]
    for n in range(6): o += [f"s_add_u32 m0, {s(sM)}, {ci*WS + n*1024}", "s_nop 0", f"buffer_load_dwordx4 {v(vMW+n)}, {s(SW,4)}, {s(sSoW)} offen lds"]
    return o
out += mdma(0, cA)
a("s_setprio 0")
out += sdbg()
a(f"v_lshrrev_b32 {v(T[0])}, 4, {L_}"); a(f"v_bfe_u32 {v(T[1])}, {L_}, 2, 2")
a(f"v_lshl_add_u32 {v(T[2])}, {v(T[0])}, 3, {v(T[1])}"); a(f"v_mul_u32_u24 {v(T[2])}, 384, {v(T[2])}")
a(f"v_and_b32 {v(T[4])}, 2, {v(T[1])}"); a(f"v_and_b32 {v(T[5])}, 1, {v(T[0])}"); a(f"v_lshl_or_b32 {v(T[4])}, {v(T[5])}, 2, {v(T[4])}")
a(f"v_bfe_u32 {v(T[5])}, {L_}, 1, 1"); a(f"s_lshl_b32 {s(t0)}, {s(sCg)}, 1"); a(f"v_add_u32 {v(T[5])}, {s(t0)}, {v(T[5])}"); a(f"v_xor_b32 {v(T[4])}, {v(T[4])}, {v(T[5])}")
a(f"v_lshl_add_u32 {v(T[2])}, {v(T[4])}, 4, {v(T[2])}"); a(f"v_and_b32 {v(T[5])}, 1, {L_}"); a(f"v_lshl_add_u32 {v(vWrB)}, {v(T[5])}, 3, {v(T[2])}")
a(f"v_and_b32 {v(T[1])}, 7, {L_}"); a(f"v_lshrrev_b32 {v(T[2])}, 1, {v(T[1])}"); a(f"v_and_b32 {v(T[2])}, 2, {v(T[2])}"); a(f"v_xor_b32 {v(T[2])}, {v(T[2])}, {v(T[0])}")
a(f"v_lshl_add_u32 {v(T[2])}, {v(T[1])}, 2, {v(T[2])}"); a(f"v_lshlrev_b32 {v(T[2])}, 4, {v(T[2])}")
a(f"v_bfe_u32 {v(T[4])}, {L_}, 3, 1"); a(f"v_lshl_add_u32 {v(T[2])}, {v(T[4])}, 10, {v(T[2])}")
a(f"v_add_u32 {v(vXr)}, {XB}, {v(T[2])}")
a(f"v_and_b32 {v(T[1])}, 15, {L_}"); a(f"v_min_u32 {v(T[2])}, 2, {v(T[1])}"); a(f"v_mul_u32_u24 {v(T[2])}, 1152, {v(T[2])}")
a(f"v_lshl_add_u32 {v(T[2])}, {v(T[0])}, 4, {v(T[2])}"); a(f"v_add_u32 {v(vSB)}, {XE}, {v(T[2])}")
a(f"v_lshlrev_b32 {v(T[6])}, 3, {v(T[1])}"); a(f"v_add_u32 {v(T[6])}, {STATS}, {v(T[6])}")
a(f"v_mul_u32_u24 {v(T[7])}, {RS}, {v(T[1])}"); a(f"v_lshl_add_u32 {v(T[7])}, {v(T[0])}, 3, {v(T[7])}")
a(f"s_lshl_b32 {s(t0)}, {s(sCg)}, 5"); a(f"v_add_u32 {v(T[7])}, {s(t0)}, {v(T[7])}")
a(f"v_mov_b32 {v(vWr)}, {v(vWrB)}"); a(f"s_lshl_b32 {s(t0)}, {s(cA)}, 7"); a(f"v_add_u32 {v(vS)}, {s(t0)}, {v(vSB)}")
out += mdma(1, cB)
for i in range(84): a(f"v_mov_b32 {v(vAcc+i)}, 0")
if PRM: a(f"s_setprio {PRM}")
a(f"s_cmp_ge_u32 {s(sCg)}, 2"); a("s_cbranch_scc1 L_m3")
Gt = vE + 8; St = vE + 16; tm = vE + 20
for i in range(4): a(f"v_mov_b32 {v(St+i)}, 0")
a(f"v_lshlrev_b32 {v(T[4])}, 1, {v(vE+40)}"); a(f"v_add_u32 {v(T[4])}, {GF32}, {v(T[4])}"); a(f"v_add_u32 {v(T[5])}, {XE}, {v(vE+40)}")
a("s_waitcnt vmcnt(13)")
for d in range(4):
    a(f"v_lshlrev_b32 {v(Gt+2*d)}, 16, {v(vE+d)}"); a(f"v_and_b32 {v(Gt+2*d+1)}, {s(sMask)}, {v(vE+d)}")
a("s_mov_b32 exec_lo, -1"); a("s_mov_b32 exec_hi, 0xf")
a(f"ds_write_b128 {v(T[4])}, {v(Gt,4)}"); a(f"ds_write_b128 {v(T[4])}, {v(Gt+4,4)} offset:16")
a("s_mov_b64 exec, -1")
a("s_waitcnt vmcnt(12)")
p1, p2 = prep_valu(vE + 4, St, Gt, tm); out += p1 + p2
a("s_mov_b32 exec_lo, -1"); a("s_mov_b32 exec_hi, 0xf")
a(f"ds_write_b128 {v(T[5])}, {v(tm+8,4)}")
a("s_mov_b64 exec, -1")
a(f"v_add_f32 {v(St)}, {v(St)}, {v(St+1)}"); a(f"v_add_f32 {v(St+1)}, {v(St+2)}, {v(St+3)}"); a("s_nop 1")
for dp in ("quad_perm:[1,0,3,2]", "quad_perm:[2,3,0,1]", "row_half_mirror", "row_mirror"):
    a(f"v_add_f32_dpp {v(St)}, {v(St)}, {v(St)} {dp} row_mask:0xf bank_mask:0xf")
    a(f"v_add_f32_dpp {v(St+1)}, {v(St+1)}, {v(St+1)} {dp} row_mask:0xf bank_mask:0xf"); a("s_nop 1")
a(f"v_lshlrev_b32 {v(T[4])}, 3, {v(T[0])}"); a(f"s_lshl_b32 {s(t0)}, {s(sCg)}, 5"); a(f"s_add_u32 {s(t0)}, {s(t0)}, {XP}"); a(f"v_add_u32 {v(T[4])}, {s(t0)}, {v(T[4])}")
a(f"ds_write_b64 {v(T[4])}, {v(St,2)}")
a("s_waitcnt lgkmcnt(0)")
a("L_m3:")
a(f"s_mov_b32 {s(sWb)}, 0"); a(f"s_mov_b32 {s(sI)}, 0")
ORD = [6, 0, 1, 2, 3, 4, 5]
def wreads(hh):
    wf = vWF + 12 * hh
    return [x for u in range(3) for x in (f"ds_read_b64_tr_b16 {v(wf+4*u,2)}, {v(vWr)} offset:{u*128 + hh*12288}", f"ds_read_b64_tr_b16 {v(wf+4*u+2,2)}, {v(vWr)} offset:{u*128 + hh*12288 + 1536}")]
def xread(hh, pos, slot=None):
    Tt = ORD[pos]; sl = pos if slot is None else slot
    if Tt == 6: return f"ds_read_b128 {v(vXF+4*sl,4)}, {v(vS)} offset:{hh*64}"
    return f"ds_read_b128 {v(vXF+4*sl,4)}, {v(vXr)} offset:{Tt*2048 + hh*512}"
def mf(hh, pos, slot=None):
    Tt = ORD[pos]; wf = vWF + 12 * hh; sl = pos if slot is None else slot
    return [f"v_mfma_f32_16x16x32_bf16 {v(vAcc+(Tt*3+u)*4,4)}, {v(wf+4*u,4)}, {v(vXF+4*sl,4)}, {v(vAcc+(Tt*3+u)*4,4)}" for u in range(3)]
def part_carry():
    W0 = wreads(0)
    o = []; pend = W0[:2] + [xread(0, 0)] + W0[2:] + [xread(0, p) for p in range(1, TC)]
    k = 0
    for pos in range(TC, 7):
        for x in mf(1, pos):
            n = 2 if k < 3 else 1
            o.append(x); o += pend[:n]; pend = pend[n:]; k += 1
        pend.append(xread(0, pos))
    return o + pend
def part_main(salu):
    o = []; pend = wreads(1); sl = list(salu)
    for pos in range(7):
        for x in mf(0, pos):
            o.append(x)
            if pend: o += pend[:1]; pend = pend[1:]
            o += sl[:1]; sl = sl[1:]
        pend.append(xread(1, pos))
    assert not sl
    pend = pend + [f"v_xor_b32 {v(vXr)}, {XS}, {v(vXr)}", f"v_add_u32 {v(vWr)}, {s(sWb)}, {v(vWrB)}", f"s_lshl_b32 {s(t0)}, {s(cA)}, 7", f"v_add_u32 {v(vS)}, {s(t0)}, {v(vSB)}"]
    for pos in range(TC):
        for x in mf(1, pos):
            o.append(x); o += pend[:1]; pend = pend[1:]
    return o + pend
a("s_waitcnt vmcnt(6)")
out += stamp(1)
out += BAR
out += stamp(2)
out += wreads(0) + [xread(0, p) for p in range(7)] + (mdma(2, cC) if W2M else []) + ["s_waitcnt lgkmcnt(0)", "s_branch L_mmid"]
a("L_mloop:")
a("s_waitcnt vmcnt(0)")
out += BAR
salu = rot_c() + wrap(sWb, WS, NWS * WS) + [f"s_add_u32 {s(sI)}, {s(sI)}, 1"]
body = auto_lgkm(part_carry() + ["L_mmid:"] + part_main(salu) + [f"s_cmp_lt_u32 {s(sI)}, 8", "s_cbranch_scc1 L_mloop"])
out += body
out += BAR
out += stamp(20)
fin = []
eR = vEe; dRs = vXF + 16
sRl = {6: 2, 0: 4, 1: 6, 2: 2, 3: 4, 4: 6, 5: 2}
M = []
pend = wreads(0) + [xread(0, 0), xread(0, 1), xread(0, 2)]
for pos in range(TC, 7):
    for x in mf(1, pos):
        M.append([x] + pend[:1]); pend = pend[1:]
pend = wreads(1) + [xread(1, 0, 3)]
seq = [(0, 0, 0), (0, 1, 1), (0, 2, 2), (1, 0, 3)]
after = {0: [xread(1, 1, 0)], 1: [xread(1, 2, 1)], 2: [xread(0, 3, 2)], 3: [xread(1, 3, 3)]}
seq += [(1, 1, 0), (1, 2, 1), (0, 3, 2), (1, 3, 3)]
after.update({4: [xread(0, 4, 0)], 5: [xread(1, 4, 1)], 6: [xread(0, 5, 2)], 7: [xread(1, 5, 3)]})
seq += [(0, 4, 0), (1, 4, 1), (0, 5, 2), (1, 5, 3)]
after.update({8: [xread(0, 6, 0)], 9: [xread(1, 6, 1)]})
seq += [(0, 6, 0), (1, 6, 1)]
done_at = {}
for i, (hh, pos, sl) in enumerate(seq):
    for x in mf(hh, pos, sl):
        M.append([x] + pend[:1]); pend = pend[1:]
    pend += after.get(i, [])
    if hh == 1: done_at[pos] = len(M)
assert not pend
def epi_tile(pos, pk):
    Tt = ORD[pos]; sR = sRl[Tt]; o = []
    for u in range(3):
        a_ = vAcc + (Tt * 3 + u) * 4
        if pk:
            for hf in range(2): o.append(f"v_pk_fma_f32 {v(vU+2*hf,2)}, {v(eR+4*u+2*hf,2)}, {v(sR,2)}, {v(dRs+4*u+2*hf,2)} op_sel:[0,1,0] op_sel_hi:[1,1,1]")
            for hf in range(2): o.append(f"v_pk_fma_f32 {v(vU+2*hf,2)}, {v(a_+2*hf,2)}, {v(sR,2)}, {v(vU+2*hf,2)} op_sel:[0,0,0] op_sel_hi:[1,0,1]")
        else:
            for j in range(4): o.append(f"v_fma_f32 {v(vU+j)}, {v(eR+4*u+j)}, {v(sR+1)}, {v(dRs+4*u+j)}")
            for j in range(4): o.append(f"v_fmac_f32 {v(vU+j)}, {v(a_+j)}, {v(sR)}")
        o.append(f"v_cvt_pk_bf16_f32 {v(a_)}, {v(vU)}, {v(vU+1)}"); o.append(f"v_cvt_pk_bf16_f32 {v(a_+1)}, {v(vU+2)}, {v(vU+3)}")
        o.append(f"ds_write_b64 {v(T[7])}, {v(a_,2)} offset:{Tt*16*RS + u*128}")
    if pos + 3 < 7: o.append(f"ds_read_b64 {v(sR,2)}, {v(T[6])} offset:{ORD[pos+3]*128}")
    if pos in (2, 4): o += BAR
    return o
dpp = []
for u in range(3):
    for j in range(4):
        dpp.append(f"v_mov_b32_dpp {v(eR+4*u+j)}, {v(vAcc+(18+u)*4+j)} row_newbcast:1 row_mask:0xf bank_mask:0xf")
        dpp.append(f"v_mov_b32_dpp {v(dRs+4*u+j)}, {v(vAcc+(18+u)*4+j)} row_newbcast:2 row_mask:0xf bank_mask:0xf")
E1POS = int(opts.get("e1pos", "36"))
NSH = int(opts.get("nsh", "1"))
LAG = 4
queue = []; nextpos = 0; started = False
for i, grp in enumerate(M):
    fin += grp
    if i + 1 == E1POS: fin += ["s_barrier"] + [f"ds_read_b64 {v(sRl[ORD[p]],2)}, {v(T[6])} offset:{ORD[p]*128}" for p in range(3)]
    if not started and i + 1 >= done_at[0] + LAG: queue += dpp; started = True
    while started and i + 1 >= E1POS and nextpos < NSH and i + 1 >= done_at[nextpos] + LAG and len(queue) < 40:
        queue += epi_tile(nextpos, False); nextpos += 1
    n = 0
    while queue and n < VPM:
        x = queue.pop(0); fin.append(x)
        if x.startswith("v_"): n += 1
fin += stamp(21)
fin += queue
if nextpos == 7 or len(queue) < 10: fin.append("s_nop 7")
pendw = []
for p in range(nextpos, 7):
    Tt = ORD[p]; sR = sRl[Tt]
    tm_ = vWF + 12 * (p % 2)
    seq_ = []
    for u in range(3):
        for hf in range(2): seq_.append(f"v_pk_fma_f32 {v(tm_+4*u+2*hf,2)}, {v(eR+4*u+2*hf,2)}, {v(sR,2)}, {v(dRs+4*u+2*hf,2)} op_sel:[0,1,0] op_sel_hi:[1,1,1]")
    for u in range(3):
        a_ = vAcc + (Tt * 3 + u) * 4
        for hf in range(2): seq_.append(f"v_pk_fma_f32 {v(tm_+4*u+2*hf,2)}, {v(a_+2*hf,2)}, {v(sR,2)}, {v(tm_+4*u+2*hf,2)} op_sel:[0,0,0] op_sel_hi:[1,0,1]")
    for i_, x in enumerate(seq_):
        fin.append(x)
        if i_ % 4 == 1 and pendw: fin.append(pendw.pop(0))
    if p + 3 < 7: fin.append(f"ds_read_b64 {v(sR,2)}, {v(T[6])} offset:{ORD[p+3]*128}")
    if p in (3, 5): fin += ([f"s_waitcnt lgkmcnt({1 if p + 3 < 7 else 0})", "s_barrier"])
    for u in range(3):
        a_ = vAcc + (Tt * 3 + u) * 4
        fin.append(f"v_cvt_pk_bf16_f32 {v(a_)}, {v(tm_+4*u)}, {v(tm_+4*u+1)}"); fin.append(f"v_cvt_pk_bf16_f32 {v(a_+1)}, {v(tm_+4*u+2)}, {v(tm_+4*u+3)}")
        w_ = f"ds_write_b64 {v(T[7])}, {v(a_,2)} offset:{Tt*16*RS + u*128}"
        if p == 6: fin.append(w_)
        else: pendw.append(w_)
assert nextpos <= 2
fin += stamp(22)
fin += BAR
fin += stamp(23)
out += auto_lgkm(fin)
a("L_fin:")
if PROF:
    out.extend(stamp(24)); A("s_waitcnt vmcnt(0)"); out.extend(stamp(25))
    A(f"s_mul_i32 s68, s2, {NWAVES}"); A(f"s_add_u32 s68, s68, {s(sWave)}"); A("s_lshl_b32 s68, s68, 8"); A("s_add_u32 s68, s68, 0x10000")
    A(f"v_lshlrev_b32 v3, 2, {L_}"); A(f"buffer_store_dword {v(vPr)}, v3, {s(SD,4)}, s68 offen")
if STAMP:
    A("s_waitcnt vmcnt(0)"); A("s_barrier"); A("s_memrealtime s[66:67]"); A("s_waitcnt lgkmcnt(0)")
    A(f"s_cmp_lg_u32 {s(sWave)}, 0"); A("s_cbranch_scc1 L_end")
    A("v_mov_b32 v4, s64"); A("v_mov_b32 v5, s65"); A("v_mov_b32 v6, s66"); A("v_mov_b32 v7, s67")
    A("s_lshl_b32 s68, s2, 4"); A("v_mov_b32 v3, s68"); A("s_mov_b64 exec, 1")
    A(f"buffer_store_dwordx4 v[4:7], v3, {s(SD,4)}, 0 offen")
A("L_end:"); A("s_endpgm")
A('.section .rodata,"a"'); A(".p2align 6"); A(f".amdhsa_kernel {NAME}")
nv = (max(NV, R.n) + 7) // 8 * 8
A(f"  .amdhsa_next_free_vgpr {nv}"); A("  .amdhsa_next_free_sgpr 72"); A(f"  .amdhsa_accum_offset {nv}")
A("  .amdhsa_group_segment_fixed_size 0"); A("  .amdhsa_kernarg_size 56"); A("  .amdhsa_user_sgpr_count 2")
A("  .amdhsa_user_sgpr_kernarg_segment_ptr 1"); A("  .amdhsa_system_sgpr_workgroup_id_x 1"); A(".end_amdhsa_kernel")
NOBAR = opts.get("nobar", "0") == "1"
if NOBAR:
    new = []; act = False
    for x in out:
        if not x: continue
        if x.startswith("L_loopP") or x.startswith("L_mloop"): act = True
        if act and x.startswith("s_cbranch_scc1 L_"): act = False
        if act and x == "s_barrier":
            if x_prev_label_m(new): new.append(f"s_cmp_eq_u32 {s(sI)}, 1"); new.append("s_cbranch_scc0 L_nb"); new.append(x); new.append("L_nb:")
            continue
        new.append(x)
    out = new
FINE = opts.get("fine", "0") == "1"
if FINE:
    new = []; active = False; idx = 0; cnt = 0; lab = 0
    def mark():
        global idx
        if idx < 15:
            new.append(f"s_memtime s[{72+2*idx}:{73+2*idx}]"); idx += 1
    for x in out:
        if not x: continue
        if x.startswith("L_loopP"):
            active = "P"; idx = 0; cnt = 0; new.append(x); mark(); continue
        if x.startswith("L_mloop"):
            active = "M0"; new.append(x); continue
        if active == "M0" and x == "s_barrier":
            new.append(x); lab += 1
            new += [f"s_cmp_eq_u32 {s(sI)}, 4", f"s_cbranch_scc0 L_nf{lab}"] + [f"v_writelane_b32 {v(vPr)}, s{72+2*i}, {30+i}" for i in range(15)] + [f"L_nf{lab}:"]
            active = "M"; idx = 0; cnt = 0; mark(); continue
        if active == "M":
            if x.startswith("v_mfma"):
                cnt += 1
                if cnt % 3 == 1 and cnt > 1: mark()
            if x.startswith("s_cmp_lt_u32"): mark(); active = False
        if active == "P":
            if x.startswith("ds_write_b128") or x.startswith("s_waitcnt vmcnt") or x.startswith("buffer_load_dwordx4 v["):
                mark(); new.append(x); mark(); continue
            if x == "s_waitcnt lgkmcnt(0)": mark()
            if x == "s_barrier":
                mark(); new.append(x); new.append("s_waitcnt lgkmcnt(0)")
                new += [f"v_writelane_b32 {v(vPr)}, s{72+2*i}, {30+i}" for i in range(idx)]
                active = False; continue
        new.append(x)
    out = [x.replace("next_free_sgpr 72", "next_free_sgpr 102") for x in new]
print("\n".join(x for x in out if x))
```

```python
import sys
from asmlib import *
opts = dict(a.split("=") for a in sys.argv[1:] if "=" in a)
XNT = opts.get("xnt", "1") == "1"
ROT = False
ROT2 = False
STAMP = opts.get("stamp", "0") == "1"
ONT = opts.get("ont", "1") == "1"
PROF = opts.get("prof", "0") in ("1", "2")
DENS = int(opts.get("dens", "3"))
PR2 = int(opts.get("pr2", "1")); PRL = int(opts.get("prl", "2")); PRM = int(opts.get("prm", "3")); PR1 = int(opts.get("pr1", "2")); LOW = int(opts.get("low", "0")); PRS = int(opts.get("prs", "3")); PH = opts.get("ph", "3"); LATE = int(opts.get("late", "0"))
WPOS = [float(x) for x in opts.get("wpos", "0.0,0.5").split(",")]
VPM = int(opts.get("vpm", "2"))
TC = 3
MFIRST = opts.get("mfirst", "0") == "1"
W2M = False
if PROF: STAMP = True
NAME = "standalone__layernorm_linear__sampling_kernel"
NWAVES = 12
WS = 24576; NWS = 5; XS = 16384; XB = 131072
GF32 = NWS * WS; XE = GF32 + 2304; GBF = XE + 1152; BBF = GBF + 1152; STATS = BBF + 1152; XP = STATS + 896
assert XP + 64 <= XB
LDSB = XB + XS + 12288
RS = int(opts.get("rs", "408"))
out = []
A = out.append; a = A
def x_prev_label_m(new): return any(y == "L_mloop:" for y in new[-4:])
hdr = open("standalone__layernorm_linear__sampling.s.ref").read().split("; Override launch")[0]
A(hdr.rstrip())
A(f"; @launch grid=(256,1,1) block=({NWAVES*64},1,1) lds={LDSB}")
A('.amdgcn_target "amdgcn-amd-amdhsa--gfx950"')
A(".text"); A(f".globl {NAME}"); A(".p2align 8"); A(f".type {NAME},@function"); A(f"{NAME}:")
SX, SW, SG, SB, SO = 16, 20, 24, 28, 32
sWave, sRb, sCs, sCg = 36, 37, 38, 39
cc = [40, 41, 42]
cA, cB, cC = cc
sI = 43
sWb = 44; sOob = 45
t0, t1, t2, t3 = 48, 49, 51, 52
sMask = 50
sSo = 58; sM = 59; sG0 = 47; sSoW = 57
SD = 60
vLane = 1; vT = 2; T = [vT + i for i in range(8)]
vPr = 10
L_ = v(vLane)
def stamp(idx):
    if not PROF: return []
    return ["s_memtime s[70:71]", "s_waitcnt lgkmcnt(0)", f"v_writelane_b32 {v(vPr)}, s70, {idx}"]
BAR = ["s_waitcnt lgkmcnt(0)", "s_barrier"]

if STAMP: A("s_memrealtime s[64:65]")
A("s_cmp_ge_u32 s2, 255"); A("s_cbranch_scc1 L_end")
A("s_load_dwordx8 s[4:11], s[0:1], 0")
A("s_load_dwordx2 s[12:13], s[0:1], 32")
if STAMP: A(f"s_load_dwordx2 s[14:15], s[0:1], 48")
A(f"v_lshrrev_b32 {v(vT)}, 6, v0"); A(f"v_and_b32 {v(vLane)}, 63, v0")
A(f"s_and_b32 {s(t0)}, s2, 7"); A(f"s_lshl_b32 {s(t0)}, {s(t0)}, 5"); A(f"s_lshr_b32 {s(t1)}, s2, 3"); A(f"s_add_u32 {s(t0)}, {s(t0)}, {s(t1)}")
A(f"v_readfirstlane_b32 {s(sWave)}, {v(vT)}")
A(f"s_mul_i32 {s(sRb)}, {s(t0)}, 21846"); A(f"s_lshr_b32 {s(sRb)}, {s(sRb)}, 16")
A(f"s_mul_i32 {s(t1)}, {s(sRb)}, 3"); A(f"s_sub_u32 {s(sCs)}, {s(t0)}, {s(t1)}")
A(f"s_and_b32 {s(sCg)}, {s(sWave)}, 3")
if MFIRST: A(f"s_add_u32 {s(sWave)}, {s(sWave)}, 8"); A(f"s_cmp_ge_u32 {s(sWave)}, 12"); A(f"s_cselect_b32 {s(t2)}, 12, 0"); A(f"s_sub_u32 {s(sWave)}, {s(sWave)}, {s(t2)}")
A(f"s_mov_b32 {s(sMask)}, 0xffff0000")
CPF = int(opts.get("cpf", "0"))
if CPF:
    A(f"s_cmp_lg_u32 {s(sWave)}, {CPF}"); A("s_cbranch_scc1 L_nocpf")
    A("s_getpc_b64 s[54:55]"); A("s_and_b32 s54, s54, 0xffffff00")
    A(f"v_lshlrev_b32 {v(T[1])}, 7, {L_}"); A(f"v_mov_b32 {v(T[3])}, s55"); A(f"v_add_co_u32 {v(T[2])}, vcc, s54, {v(T[1])}"); A("s_nop 1"); A(f"v_addc_co_u32 {v(T[3])}, vcc, 0, {v(T[3])}, vcc")
    A(f"global_load_dword v166, {v(T[2],2)}, off")
    A(f"v_add_co_u32 {v(T[2])}, vcc, 0x2000, {v(T[2])}"); A("s_nop 1"); A(f"v_addc_co_u32 {v(T[3])}, vcc, 0, {v(T[3])}, vcc")
    A("v_cmp_gt_u32 vcc, CPFN, v1"); A("s_and_saveexec_b64 s[56:57], vcc")
    A(f"global_load_dword v167, {v(T[2],2)}, off"); A("s_mov_b64 exec, -1")
    A("L_nocpf:")
if ROT:
    A(f"s_mul_i32 {s(t0)}, {s(sRb)}, 21846"); A(f"s_lshr_b32 {s(t0)}, {s(t0)}, 16")
    A(f"s_mul_i32 {s(t1)}, {s(t0)}, 3"); A(f"s_sub_u32 {s(t1)}, {s(sRb)}, {s(t1)}")
    A(f"s_mul_i32 {s(t2)}, {s(t0)}, 21846"); A(f"s_lshr_b32 {s(t2)}, {s(t2)}, 16"); A(f"s_mul_i32 {s(t2)}, {s(t2)}, 3"); A(f"s_sub_u32 {s(t0)}, {s(t0)}, {s(t2)}")
    A(f"s_mul_i32 {s(t0)}, {s(t0)}, 3")
    A(f"s_add_u32 {s(t1)}, {s(t1)}, {s(sCs)}")
    for k, cr in enumerate(cc):
        if k: A(f"s_add_u32 {s(t1)}, {s(t1)}, 1")
        A(f"s_cmp_ge_u32 {s(t1)}, 3"); A(f"s_cselect_b32 {s(t2)}, 3, 0"); A(f"s_sub_u32 {s(t1)}, {s(t1)}, {s(t2)}")
        A(f"s_add_u32 {s(cr)}, {s(t0)}, {s(t1)}")
elif ROT2:
    A(f"s_mov_b32 {s(cA)}, {s(sCs)}"); A(f"s_add_u32 {s(cB)}, {s(sCs)}, 1"); A(f"s_cmp_ge_u32 {s(cB)}, 3"); A(f"s_cselect_b32 {s(cB)}, 0, {s(cB)}")
    A(f"s_add_u32 {s(cC)}, {s(cB)}, 1"); A(f"s_cmp_ge_u32 {s(cC)}, 3"); A(f"s_cselect_b32 {s(cC)}, 0, {s(cC)}")
else:
    A(f"s_mov_b32 {s(cA)}, 0"); A(f"s_mov_b32 {s(cB)}, 1"); A(f"s_mov_b32 {s(cC)}, 2")
def rot_c():
    return [f"s_add_u32 {s(t2)}, {s(cA)}, 3", f"s_cmp_ge_u32 {s(t2)}, 9", f"s_cselect_b32 {s(t1)}, 9, 0", f"s_sub_u32 {s(t2)}, {s(t2)}, {s(t1)}",
            f"s_mov_b32 {s(cA)}, {s(cB)}", f"s_mov_b32 {s(cB)}, {s(cC)}", f"s_mov_b32 {s(cC)}, {s(t2)}"]
def adv3(c):
    return [f"s_add_u32 {s(c)}, {s(c)}, 3", f"s_cmp_ge_u32 {s(c)}, 9", f"s_cselect_b32 {s(t1)}, 9, 0", f"s_sub_u32 {s(c)}, {s(c)}, {s(t1)}"]
def wrap(reg, inc, lim, base=0):
    return [f"s_add_u32 {s(reg)}, {s(reg)}, {inc}", f"s_cmp_ge_u32 {s(reg)}, {lim}", f"s_cselect_b32 {s(reg)}, {base}, {s(reg)}"]
def srd(d):
    r, p, nb = d
    return [f"s_mov_b32 {s(r)}, {s(p)}", f"s_mov_b32 {s(r+1)}, {s(p+1)}", f"s_mov_b32 {s(r+2)}, {nb}", f"s_mov_b32 {s(r+3)}, 0x20000"]
def srds(lst):
    o = ["s_waitcnt lgkmcnt(0)"] + stamp(0)
    for d in lst: o += srd(d)
    return o
def sdbg():
    return [f"s_mov_b32 {s(SD)}, s14", f"s_mov_b32 {s(SD+1)}, s15", f"s_mov_b32 {s(SD+2)}, 0x100000", f"s_mov_b32 {s(SD+3)}, 0x20000"] if STAMP else []
dX, dG, dB, dW, dO = (SX, 4, 9437184), (SG, 6, 1152), (SB, 8, 1152), (SW, 10, 663552), (SO, 12, 9437184)
xnt = {"1": " nt", "0": "", "2": " sc0 sc1 nt"}[opts.get("xnt", "2")]
ont = {"1": " nt", "0": "", "2": " sc0 sc1 nt", "3": " sc1 nt"}[opts.get("ont", "1")]
A(f"s_cmp_ge_u32 {s(sWave)}, 8"); A("s_cbranch_scc1 L_mfma")

def prep_valu(raw, st, G, tm):
    p1 = []; p2 = []
    for d in range(4):
        lo, hi = tm + 2 * d, tm + 2 * d + 1
        p1 += [f"v_lshlrev_b32 {v(lo)}, 16, {v(raw+d)}", f"v_and_b32 {v(hi)}, {s(sMask)}, {v(raw+d)}",
               f"v_add_f32 {v(st)}, {v(st)}, {v(lo)}", f"v_add_f32 {v(st+1)}, {v(st+1)}, {v(hi)}",
               f"v_fmac_f32 {v(st+2)}, {v(lo)}, {v(lo)}", f"v_fmac_f32 {v(st+3)}, {v(hi)}, {v(hi)}"]
        p2 += [f"v_mul_f32 {v(lo)}, {v(lo)}, {v(G+2*d)}", f"v_mul_f32 {v(hi)}, {v(hi)}, {v(G+2*d+1)}", f"v_cvt_pk_bf16_f32 {v(tm+8+d)}, {v(lo)}, {v(hi)}"]
    return p1, p2

R = Regs(11)
vWd = R.alloc("wd", 6); vXd = R.alloc("xd"); vPB_ = R.alloc("pb"); vP = R.alloc("p")
vSa = R.alloc("sa", 6)
vGB = R.alloc("gb"); vG = R.alloc("g")
vSt = R.alloc("stats", 8, 4); vGq = R.alloc("gq", 8, 4); vTm = R.alloc("tmp", 24, 4); vY = R.alloc("y", 4, 2); vPk = R.alloc("pk", 8, 4); vRaw = R.alloc("raw", 72, 4); vRes = R.alloc("res", 4, 2); vG0 = R.alloc("g0", 8, 4); vXa = R.alloc("xa", 2)
vPf = vWd
assert vSa == 20
a(f"s_lshl_b32 {s(t0)}, {s(sCg)}, 1"); a(f"s_add_u32 {s(t1)}, {s(sCg)}, 8"); a(f"s_cmp_ge_u32 {s(sWave)}, 4"); a(f"s_cselect_b32 {s(sG0)}, {s(t0)}, {s(t1)}")
a(f"v_lshrrev_b32 {v(T[0])}, 3, {L_}"); a(f"v_and_b32 {v(T[0])}, 2, {v(T[0])}"); a(f"v_and_b32 {v(T[1])}, 3, {L_}"); a(f"v_xor_b32 {v(T[0])}, {v(T[0])}, {v(T[1])}")
a(f"v_lshrrev_b32 {v(T[1])}, 5, {L_}"); a(f"v_lshl_add_u32 {v(T[0])}, {v(T[1])}, 2, {v(T[0])}"); a(f"v_bfe_u32 {v(T[1])}, {L_}, 2, 3"); a(f"v_lshlrev_b32 {v(T[3])}, 4, {v(T[0])}")
a(f"s_mul_i32 {s(t0)}, {s(sRb)}, 12"); a(f"s_add_u32 {s(t0)}, {s(t0)}, {s(sG0)}"); a(f"s_mul_i32 {s(t0)}, {s(t0)}, 9216")
a(f"v_mul_u32_u24 {v(T[2])}, 1152, {v(T[1])}"); a(f"v_add3_u32 {v(vXd)}, {v(T[2])}, {v(T[3])}, {s(t0)}")
a(f"s_mov_b32 {s(sOob)}, 0")
a(f"s_cmp_ge_u32 {s(sWave)}, 4"); a("s_cbranch_scc1 L_p2")
a(f"s_cmp_ge_u32 {s(sWave)}, 2"); a("s_cbranch_scc1 L_p1")

def xload(ng, buf, creg, tag, oob=False):
    o = [f"s_lshl_b32 {s(sSo)}, {s(creg)}, 7"]
    if oob: o.append(f"s_or_b32 {s(sSo)}, {s(sSo)}, {s(sOob)}")
    for g in range(ng):
        if g: o.append(f"s_add_u32 {s(sSo)}, {s(sSo)}, 9216")
        o.append(f"buffer_load_dwordx4 {v(vRaw+(buf*2+g)*4,4)}, {v(vXd)}, {s(SX,4)}, {s(sSo)} offen{xnt} ;#{tag}")
    return o
def wdma_units(creg, tag, oob=False):
    u = []
    for n in range(12):
        pre = []
        if n == 0:
            pre = [f"s_mul_i32 {s(sSoW)}, {s(creg)}, 73728"] + ([f"s_or_b32 {s(sSoW)}, {s(sSoW)}, {s(sOob)}"] if oob else [])
        elif n == 6: pre = [f"s_add_u32 {s(sSoW)}, {s(sSoW)}, {16*1152}"]
        u.append(pre + [f"s_add_u32 m0, {s(sM)}, {n*1024}", "DELAY", f"buffer_load_dwordx4 {v(vWd+n%6)}, {s(SW,4)}, {s(sSoW)} offen lds ;#{tag}"])
    u[-1] += [f"s_add_u32 {s(sM)}, {s(sM)}, {WS}", f"s_cmp_ge_u32 {s(sM)}, {NWS*WS}", f"s_cselect_b32 s56, {NWS*WS}, 0", f"s_sub_u32 {s(sM)}, {s(sM)}, s56"]
    return u
def weave(valu, units, dens=None):
    o = []; n = len(valu); k = len(units); iv = 0
    for j, u in enumerate(units):
        tgt = min(n, (n * j) // k if dens is None else j * dens)
        o += valu[iv:tgt]; iv = max(iv, tgt)
        for x in u:
            if x == "DELAY":
                if iv < n and valu[iv].startswith("v_"): o.append(valu[iv]); iv += 1
                else: o.append("s_nop 0")
            else: o.append(x)
    o += valu[iv:]
    return o
def prep_setup():
    o = []; a = o.append
    a(f"v_lshlrev_b32 {v(vGB)}, 5, {v(T[0])}"); a(f"v_add_u32 {v(vGB)}, {GF32}, {v(vGB)}")
    a(f"s_lshl_b32 {s(t0)}, {s(sG0)}, 10"); a(f"s_add_u32 {s(t0)}, {s(t0)}, {XB}"); a(f"v_lshlrev_b32 {v(T[2])}, 4, {L_}"); a(f"v_add_u32 {v(vP)}, {s(t0)}, {v(T[2])}")
    for i in range(8): a(f"v_mov_b32 {v(vSt+i)}, 0")
    return o
def store_setup():
    o = []; a = o.append
    a(f"s_mul_i32 {s(t0)}, {s(sRb)}, {96*1152}"); a(f"s_mul_i32 {s(t1)}, {s(sCs)}, 384"); a(f"s_add_u32 {s(t0)}, {s(t0)}, {s(t1)}")
    a(f"s_mul_i32 {s(t3)}, {s(sWave)}, 9216"); a(f"s_add_u32 {s(t0)}, {s(t0)}, {s(t3)}"); a(f"s_mul_i32 {s(t3)}, {s(sWave)}, {8*RS}")
    for n in range(3):
        a(f"v_add_u32 {v(T[4])}, {n*64}, {L_}")
        a(f"v_mul_u32_u24 {v(T[5])}, 2731, {v(T[4])}"); a(f"v_lshrrev_b32 {v(T[5])}, 16, {v(T[5])}")
        a(f"v_mul_u32_u24 {v(T[6])}, 24, {v(T[5])}"); a(f"v_sub_u32 {v(T[4])}, {v(T[4])}, {v(T[6])}"); a(f"v_lshlrev_b32 {v(T[4])}, 4, {v(T[4])}")
        a(f"v_mul_u32_u24 {v(T[6])}, {RS}, {v(T[5])}"); a(f"v_add3_u32 v{20+n}, {v(T[6])}, {v(T[4])}, {s(t3)}")
        a(f"v_mul_u32_u24 {v(T[6])}, 1152, {v(T[5])}"); a(f"v_add3_u32 v{23+n}, {v(T[6])}, {v(T[4])}, {s(t0)}")
    a(f"v_lshlrev_b32 {v(T[4])}, 4, {L_}"); a(f"v_add_u32 {v(vXa)}, {96*RS}, {v(T[4])}")
    a(f"s_add_u32 {s(t2)}, {s(sRb)}, 8160"); a(f"s_mul_i32 {s(t2)}, {s(t2)}, 1152"); a(f"s_add_u32 {s(t2)}, {s(t2)}, {s(t1)}")
    a(f"v_add_u32 {v(T[4])}, {s(t2)}, {v(T[4])}"); a(f"v_mov_b32 {v(T[5])}, 0x40000000"); a(f"v_cmp_gt_u32 vcc, 24, {L_}"); a("s_nop 1"); a(f"v_cndmask_b32 {v(vXa+1)}, {v(T[5])}, {v(T[4])}, vcc")
    return o
def gload(creg, dst, tag):
    return [f"s_lshl_b32 {s(t0)}, {s(creg)}, 7", f"buffer_load_dwordx4 {v(dst,4)}, {v(T[3])}, {s(SG,4)}, {s(t0)} offen ;#{tag}"]
def gunpack(src):
    o = []
    for d in range(4): o += [f"v_lshlrev_b32 {v(vGq+2*d)}, 16, {v(src+d)}", f"v_and_b32 {v(vGq+2*d+1)}, {s(sMask)}, {v(src+d)}"]
    return o
def parts(ng, buf):
    un = []; sc = []; stt = []
    for g in range(ng):
        raw = vRaw + (buf * 2 + g) * 4; st = vSt + 4 * g; tm = vTm + 8 * g; y = vY; pk = vPk + 4 * g
        for d in range(4):
            lo, hi = tm + 2 * d, tm + 2 * d + 1
            un += [f"v_lshlrev_b32 {v(lo)}, 16, {v(raw+d)}", f"v_and_b32 {v(hi)}, {s(sMask)}, {v(raw+d)}"]
            sc += [f"v_mul_f32 {v(y+2*(d%2))}, {v(lo)}, {v(vGq+2*d)}", f"v_mul_f32 {v(y+2*(d%2)+1)}, {v(hi)}, {v(vGq+2*d+1)}", f"v_cvt_pk_bf16_f32 {v(pk+d)}, {v(y+2*(d%2))}, {v(y+2*(d%2)+1)}"]
            stt += [f"v_add_f32 {v(st)}, {v(st)}, {v(lo)}", f"v_add_f32 {v(st+1)}, {v(st+1)}, {v(hi)}", f"v_fmac_f32 {v(st+2)}, {v(lo)}, {v(lo)}", f"v_fmac_f32 {v(st+3)}, {v(hi)}, {v(hi)}"]
        sc.append(f"ds_write_b128 {v(vP)}, {v(pk,4)} offset:{g*1024}")
    return un, sc, stt
def resolve_vm(seq):
    q = []; res = {}
    for x in seq:
        if x.startswith("WAITVM"):
            tags, wid = x[7:].split("@"); tags = tags.split(",")
            last = max([i for i, t in enumerate(q) if t in tags], default=-1)
            n = len(q) - 1 - last if last >= 0 else 63
            res[wid] = min(res.get(wid, 63), n)
        elif ";#" in x: q.append(x.split(";#")[1])
    return res
XS_ = opts.get("xs", "r"); WL = int(opts.get("wl", "1"))
XSCHED = {"a": {1: [2, 3, 4], 2: [5], 3: [6], 4: [7], 5: [8]},
          "b": {1: [2, 3, 4, 5], 2: [6, 7], 3: [8]},
          "c": {1: [2, 3, 4, 5, 6, 7, 8]},
          "d": {0: [2, 3], 1: [4, 5], 2: [6, 7], 3: [8]},
          "e": {1: [2, 3], 2: [4, 5], 3: [6, 7], 4: [8]},
          "r": {1: [2, 3], 2: [4], 3: [5], 4: [6], 5: [7], 6: [8]}}[XS_]
WSCHED = {2: {1: [2, 3], 2: [4], 3: [5], 4: [6], 5: [7], 6: [8]}, 3: {1: [2, 3], 2: [4, 5], 3: [6], 4: [7], 5: [8]}, 4: {1: [2, 3, 4], 2: [5], 3: [6], 4: [7], 5: [8]},
          1: {1: [2], 2: [3], 3: [4], 4: [5], 5: [6], 6: [7], 7: [8]}, 5: {1: [2], 2: [3], 3: [4, 5], 4: [6], 5: [7], 6: [8]}}[WL]
def xl(ng, c):
    return [f"buffer_load_dwordx4 {v(vRaw+(c*2+g)*4,4)}, {v(vXd)}, {s(SX,4)}, {s(sSo) if g else 0} offen offset:{c*128}{xnt} ;#x{c}" for g in range(ng)]
def wu(c):
    u = []
    for n in range(12):
        pre = [f"s_mov_b32 {s(sSoW)}, {c*73728 + (n//6)*16*1152}"] if n % 6 == 0 else []
        u.append(pre + [f"s_add_u32 m0, {s(sM)}, {(c%NWS)*WS + n*1024}", "DELAY", f"buffer_load_dwordx4 {v(vWd+n%6)}, {s(SW,4)}, {s(sSoW)} offen lds ;#W{c}"])
    return u
PFW = opts.get("pfw", "0") == "1"; PFX = opts.get("pfx", "0") == "1"
PFXS = {"a": {-1: [3], 0: [5], 2: [7]}, "b": {-1: [3, 5], 1: [7]}, "c": {-1: [3, 5, 7]}, "d": {0: [5], 2: [7]}, "f": {j: [j + 4] for j in range(0, 5)}, "g": {j: [j + 3] for j in range(1, 6)}}[opts.get("pfxs", "a")]
def pf_setup():
    o = []; a = o.append
    a(f"s_mul_i32 {s(t0)}, {s(sRb)}, 96"); a(f"s_lshl_b32 {s(t1)}, {s(sCs)}, 5"); a(f"s_add_u32 {s(t0)}, {s(t0)}, {s(t1)}"); a(f"s_mul_i32 {s(t0)}, {s(t0)}, 1152")
    a(f"s_cmp_eq_u32 {s(sWave)}, 2"); a(f"s_cselect_b32 {s(t0)}, {s(t0)}, 0x40000000")
    a(f"v_and_b32 {v(T[4])}, 31, {L_}"); a(f"v_mul_u32_u24 {v(T[4])}, 1152, {v(T[4])}"); a(f"v_lshrrev_b32 {v(T[5])}, 5, {L_}"); a(f"v_lshl_add_u32 {v(T[4])}, {v(T[5])}, {30 if opts.get('pfxs') in ('f', 'g') else 7}, {v(T[4])}"); a(f"v_add_u32 {v(vPf)}, {s(t0)}, {v(T[4])}")
    a(f"s_lshr_b32 {s(t0)}, s2, 3"); a(f"s_mul_i32 {s(t0)}, {s(t0)}, {18*128}")
    a(f"s_cmp_eq_u32 {s(sWave)}, 3"); a(f"s_cselect_b32 {s(t0)}, {s(t0)}, 0x40000000")
    a(f"v_mul_u32_u24 {v(T[4])}, 3641, {L_}"); a(f"v_lshrrev_b32 {v(T[4])}, 16, {v(T[4])}"); a(f"v_mul_u32_u24 {v(T[5])}, 18, {v(T[4])}"); a(f"v_sub_u32 {v(T[5])}, {L_}, {v(T[5])}")
    a(f"v_mul_u32_u24 {v(T[4])}, 73728, {v(T[4])}"); a(f"v_lshl_add_u32 {v(T[4])}, {v(T[5])}, 7, {v(T[4])}"); a(f"v_add_u32 {v(T[4])}, {s(t0)}, {v(T[4])}")
    a(f"v_mov_b32 {v(T[5])}, 0x40000000"); a(f"v_cmp_gt_u32 vcc, {18*PFN}, {L_}"); a("s_nop 1"); a(f"v_cndmask_b32 {v(vPf+1)}, {v(T[5])}, {v(T[4])}, vcc")
    o += srd(dW)
    return o
PFN = int(opts.get("pfn", "2"))
PFWS = {"a": {-1: [2], 0: [4], 2: [6], 3: [8]}, "b": {-1: [2], 0: [4], 1: [6], 2: [8]}, "c": {0: [3], 1: [5], 2: [7]}, "d": {-1: [3], 1: [6]}, "f": {j: [j + 3] for j in range(-1, 6)}, "g": {j: [j + 2] for j in range(0, 7)}}[opts.get("pfws", "a")]
def pfx(j):
    o = [f"buffer_load_dword {v(vPf+2)}, {v(vPf)}, {s(SX,4)}, 0 offen offset:{c*128}{xnt} ;#pf" for c in PFXS.get(j, [])] if PFX else []
    if PFW:
        for c in PFWS.get(j, []): o += [f"s_mov_b32 {s(sSoW)}, {c*73728}", f"buffer_load_dword {v(vPf+2)}, {v(vPf+1)}, {s(SW,4)}, {s(sSoW)} offen ;#pf"]
    return o
def interval(role, j):
    ng = 2 if role == "P2" else 1
    nW = role == "PL"
    wid = f"{role}{j}"
    hi = {"PL": PRL, "P2": PR2, "P1": PR1}[role]
    un, sc, stt = parts(ng, j)
    sc = [(x.rsplit("offset:", 1)[0] + f"offset:{int(x.rsplit('offset:', 1)[1]) + (j%2)*XS}") if x.startswith("ds_write") else x for x in sc]
    gnext = [f"ds_read_b128 {v(vGq,4)}, {v(vGB)} offset:{(j+1)*256}", f"ds_read_b128 {v(vGq+4,4)}, {v(vGB)} offset:{(j+1)*256+16}"] if j < 8 else []
    loads = [x for c in XSCHED.get(j, []) for x in xl(ng, c)] + (pfx(j) if role == "P1" else [])
    o = [f"s_setprio {hi}"] if hi else []
    if j == 0:
        return o + [f"WAITVM x0,g0@{wid}"] + gunpack(vG0) + un + sc + loads + BAR
    pre = []
    if j == 1:
        _, _, st0 = parts(ng, 0)
        pre = loads[:2*ng] + st0 + [f"WAITVM g1@{wid}g"] + gunpack(vG0 + 4); loads = loads[2*ng:]
    if role == "P1" and j == int(opts.get("touch", "-1")):
        loads = loads + srd(dO) + ["s_mov_b64 exec, 1", f"buffer_load_dword {v(vPf+2)}, v23, {s(SO,4)}, 0 offen ;#tc", f"s_mov_b32 {s(t0)}, {9*9216}", f"buffer_load_dword {v(vPf+2)}, v23, {s(SO,4)}, {s(t0)} offen ;#tc", "s_mov_b64 exec, -1"]
    crit = pre + [f"WAITVM x{j}@{wid}"] + un + loads + sc + gnext
    units = [u for c in WSCHED.get(j, []) for u in wu(c)] if nW else []
    if units:
        full = weave(crit + ["SPLIT"] + stt, units)
        i = full.index("SPLIT"); crit = full[:i]; tail = full[i+1:]
    else: tail = stt
    o += crit
    if j == 8: return o + ["s_waitcnt vmcnt(0)"] + BAR + [f"s_setprio {PRS}"] + tail
    o += ([f"s_setprio {LOW}"] if (hi != LOW and not nW) else []) + tail
    o += ([f"WAITVM W{j}@{wid}w"] if nW else []) + BAR
    return o
def prep_role(role):
    ng = 2 if role == "P2" else 1
    nW = role == "PL"
    pro = [f"s_movk_i32 {s(sSo)}, 9216", f"buffer_load_dwordx4 {v(vG0,4)}, {v(T[3])}, {s(SG,4)}, 0 offen ;#g0"] + xl(ng, 0) + prep_setup() + xl(ng, 1) + [f"buffer_load_dwordx4 {v(vG0+4,4)}, {v(T[3])}, {s(SG,4)}, 0 offen offset:128 ;#g1"]
    if nW: pro += srd(dW) + waddr(vWd, f"s_mul_i32 {s(t1)}, {s(sWave)}, {32*1152}") + [f"s_mul_i32 {s(sM)}, {s(sWave)}, 12288"]
    if role == "P1" and (PFW or PFX): pro += pf_setup() + pfx(-1)
    pro += store_setup() + stamp(1)
    code = pro
    for j in range(9):
        code += interval(role, j)
        if j < 2 or (opts.get('prof') == '1' and j < 8): code += stamp(2 + j)
    res = resolve_vm(code)
    code += ["s_branch L_pstats"]
    return [(f"s_waitcnt vmcnt({res[x.split('@')[1]]})" if x.startswith("WAITVM") else x.split(" ;#")[0]) for x in code]
def waddr(dst, rowoff):
    o = []; a = o.append
    a(f"s_mul_i32 {s(t0)}, {s(sCs)}, 384"); a(rowoff); a(f"s_add_u32 {s(t0)}, {s(t0)}, {s(t1)}")
    for n in range(3):
        a(f"v_add_u32 {v(T[4])}, {n*64}, {L_}")
        a(f"v_mul_u32_u24 {v(T[5])}, 2731, {v(T[4])}"); a(f"v_lshrrev_b32 {v(T[5])}, 16, {v(T[5])}")
        a(f"v_mul_u32_u24 {v(T[6])}, 24, {v(T[5])}"); a(f"v_sub_u32 {v(T[4])}, {v(T[4])}, {v(T[6])}")
        a(f"v_and_b32 {v(T[6])}, 2, {v(T[5])}"); a(f"v_xor_b32 {v(T[4])}, {v(T[4])}, {v(T[6])}")
        a(f"v_mul_u32_u24 {v(T[5])}, 1152, {v(T[5])}"); a(f"v_lshl_add_u32 {v(T[4])}, {v(T[4])}, 4, {v(T[5])}"); a(f"v_add_u32 {v(dst+n)}, {s(t0)}, {v(T[4])}")
        a(f"v_xor_b32 {v(T[4])}, 64, {v(dst+n)}"); a(f"v_add_u32 {v(dst+n+3)}, 9216, {v(T[4])}")
    return o
if PRL: a(f"s_setprio {PRL}")
out += srds([dX, dG])
out += prep_role("PL")
a("L_p1:")
out += srds([dX, dG])
out += prep_role("P1")
a("L_p2:")
if PR2: a(f"s_setprio {PR2}")
out += srds([dX, dG])
out += prep_role("P2")[:-1]
a("L_pstats:")
a(f"s_lshl_b32 {s(t0)}, {s(sG0)}, 6"); a(f"s_add_u32 {s(t0)}, {s(t0)}, {STATS}")
a(f"v_bfe_u32 {v(T[2])}, {L_}, 2, 4"); a(f"v_lshlrev_b32 {v(T[2])}, 3, {v(T[2])}"); a(f"v_add_u32 {v(T[2])}, {s(t0)}, {v(T[2])}")
a(f"s_cmp_ge_u32 {s(sWave)}, 4"); a("s_cbranch_scc1 L_ps2")
a(f"v_and_b32 {v(T[0])}, 3, {L_}"); a(f"v_lshrrev_b32 {v(T[1])}, 5, {L_}"); a(f"v_lshl_add_u32 {v(T[0])}, {v(T[1])}, 2, {v(T[0])}"); a(f"v_lshlrev_b32 {v(T[0])}, 3, {v(T[0])}")
a(f"v_add_u32 {v(T[0])}, {XP}, {v(T[0])}")
a(f"ds_read_b64 {v(vGq,2)}, {v(T[0])}"); a(f"v_mov_b32 {v(T[1])}, {STATS + 96*8}"); a(f"v_cmp_gt_u32 vcc, 32, {L_}"); a("s_waitcnt lgkmcnt(0)")
a(f"v_mov_b32 {v(vSt+4)}, {v(vGq)}"); a(f"v_mov_b32 {v(vSt+6)}, {v(vGq+1)}"); a(f"v_cndmask_b32 {v(T[2])}, {v(T[1])}, {v(T[2])}, vcc")
a("L_ps2:")
p, q, r, w = vSt, vSt + 4, vSt + 2, vSt + 6
a(f"v_add_f32 {v(p)}, {v(p)}, {v(p+1)}"); a(f"v_add_f32 {v(q)}, {v(q)}, {v(q+1)}"); a(f"v_add_f32 {v(r)}, {v(r)}, {v(r+1)}"); a(f"v_add_f32 {v(w)}, {v(w)}, {v(w+1)}"); a("s_nop 1")
a(f"v_permlane32_swap_b32 {v(p)}, {v(q)}"); a(f"v_permlane32_swap_b32 {v(r)}, {v(w)}"); a("s_nop 1")
a(f"v_add_f32 {v(p)}, {v(p)}, {v(q)}"); a(f"v_add_f32 {v(r)}, {v(r)}, {v(w)}"); a("s_nop 1")
for qp in ("[1,0,3,2]", "[2,3,0,1]"):
    a(f"v_add_f32_dpp {v(p)}, {v(p)}, {v(p)} quad_perm:{qp} row_mask:0xf bank_mask:0xf"); a(f"v_add_f32_dpp {v(r)}, {v(r)}, {v(r)} quad_perm:{qp} row_mask:0xf bank_mask:0xf"); a("s_nop 1")
a(f"v_mul_f32 {v(p)}, 0x3ae38e39, {v(p)}"); a(f"v_mul_f32 {v(r)}, 0x3ae38e39, {v(r)}")
a(f"v_fma_f32 {v(r)}, -{v(p)}, {v(p)}, {v(r)}"); a(f"v_max_f32 {v(r)}, 0, {v(r)}")
a(f"v_cvt_pk_bf16_f32 {v(q)}, {v(p)}, {v(r)}"); a(f"v_and_b32 {v(r)}, {s(sMask)}, {v(q)}"); a(f"v_lshlrev_b32 {v(p)}, 16, {v(q)}")
a(f"v_add_f32 {v(r)}, 0x3727c5ac, {v(r)}"); a(f"v_cvt_pk_bf16_f32 {v(q)}, {v(r)}, {v(r)}"); a(f"v_and_b32 {v(r)}, {s(sMask)}, {v(q)}")
a(f"v_sqrt_f32 {v(r)}, {v(r)}"); a("s_nop 0"); a(f"v_cvt_pk_bf16_f32 {v(q)}, {v(r)}, {v(r)}"); a(f"v_and_b32 {v(r)}, {s(sMask)}, {v(q)}")
a(f"v_rcp_f32 {v(vRes)}, {v(r)}"); a("s_nop 0"); a(f"v_mul_f32_e64 {v(vRes+1)}, -{v(p)}, {v(vRes)}")
a(f"ds_write_b64 {v(T[2])}, {v(vRes,2)}")
out += stamp(19)
out += BAR
a("s_setprio 0")
out += srd(dO) + sdbg()
a(f"s_mov_b32 {s(sSo)}, {8*9216}")
a("s_barrier")
out += stamp(22)
a(f"s_cmp_ge_u32 {s(sWave)}, 4"); a("s_cbranch_scc1 L_stB")
st = []
for k in range(3): st.append(f"ds_read2_b64 {v(vTm+4*k,4)}, v{20+k} offset0:0 offset1:1")
for k in range(3): st.append(f"buffer_store_dwordx4 {v(vTm+4*k,4)}, v{23+k}, {s(SO,4)}, 0 offen{ont}")
out += auto_lgkm(st)
for k in range(3): a(f"v_add_u32 v{20+k}, {64*RS}, v{20+k}")
a("s_barrier"); a("s_barrier")
out += stamp(23)
st = []
for k in range(3): st.append(f"ds_read2_b64 {v(vTm+12+4*k,4)}, v{20+k} offset0:0 offset1:1")
for k in range(3): st.append(f"buffer_store_dwordx4 {v(vTm+12+4*k,4)}, v{23+k}, {s(SO,4)}, {s(sSo)} offen{ont}")
out += auto_lgkm(st)
a("s_branch L_fin")
a("L_stB:")
a(f"s_cmp_eq_u32 {s(sWave)}, 4"); a("s_cbranch_scc0 L_st3")
a(f"ds_read2_b64 {v(vTm+12,4)}, {v(vXa)} offset0:0 offset1:1"); a("s_waitcnt lgkmcnt(0)"); a(f"buffer_store_dwordx4 {v(vTm+12,4)}, {v(vXa+1)}, {s(SO,4)}, 0 offen{ont}")
a("L_st3:")
a("s_barrier")
st = []
for k in range(3): st.append(f"ds_read2_b64 {v(vTm+4*k,4)}, v{20+k} offset0:0 offset1:1")
for k in range(3): st.append(f"buffer_store_dwordx4 {v(vTm+4*k,4)}, v{23+k}, {s(SO,4)}, 0 offen{ont}")
out += auto_lgkm(st)
a("s_barrier")
out += stamp(23)
a("s_branch L_fin")

a("L_mfma:")
if PRM: a(f"s_setprio {PRM}")
vWrB, vWr, vXr, vSB, vS = 11, 12, 13, 14, 15
vAcc = 16; vWF = 100; vXF = 124; vEe = 152; vU = 164; NV = 168
vE = vAcc
vMW = vEe
vE = vXF - 24
a(f"v_lshlrev_b32 {v(T[3])}, 4, {L_}")
a(f"s_mul_i32 {s(t0)}, {s(sCg)}, 576"); a(f"v_add_u32 {v(T[6])}, {s(t0)}, {v(T[3])}")
a(f"v_mov_b32 {v(T[5])}, 0x40000000"); a(f"v_cmp_gt_u32 vcc, 36, {L_}"); a(f"s_add_u32 {s(t3)}, {s(sRb)}, 8160"); a(f"s_mul_i32 {s(t3)}, {s(t3)}, 1152"); a(f"v_cndmask_b32 {v(vE+40)}, {v(T[5])}, {v(T[6])}, vcc")
out += waddr(vMW, f"s_mul_i32 {s(t1)}, {s(sCg)}, {16*1152}")
out += srds([dX, dG, dB, dW])
a(f"s_cmp_ge_u32 {s(sCg)}, 2"); a("s_cbranch_scc1 L_mt")
a(f"buffer_load_dwordx4 {v(vE,4)}, {v(vE+40)}, {s(SG,4)}, 0 offen")
a(f"buffer_load_dwordx4 {v(vE+4,4)}, {v(vE+40)}, {s(SX,4)}, {s(t3)} offen")
a("s_branch L_m1")
a("L_mt:")
a(f"s_cmp_eq_u32 {s(sCg)}, 2"); a("s_cbranch_scc0 L_mtb")
a(f"s_mov_b32 m0, {GBF}"); a("s_nop 0"); a(f"buffer_load_dwordx4 {v(T[3])}, {s(SG,4)}, 0 offen lds")
a("s_mov_b64 exec, 0xff"); a(f"buffer_load_dwordx4 {v(T[3])}, {s(SG,4)}, 0 offen offset:1024 lds"); a("s_mov_b64 exec, -1")
a("s_branch L_m1")
a("L_mtb:")
a(f"s_mov_b32 m0, {BBF}"); a("s_nop 0"); a(f"buffer_load_dwordx4 {v(T[3])}, {s(SB,4)}, 0 offen lds")
a("s_mov_b64 exec, 0xff"); a(f"buffer_load_dwordx4 {v(T[3])}, {s(SB,4)}, 0 offen offset:1024 lds"); a("s_mov_b64 exec, -1")
a("L_m1:")
a(f"s_mul_i32 {s(sM)}, {s(sCg)}, 6144")
def mdma(ci, cr):
    o = [f"s_mul_i32 {s(sSoW)}, {s(cr)}, 73728"]
    for n in range(6): o += [f"s_add_u32 m0, {s(sM)}, {ci*WS + n*1024}", "s_nop 0", f"buffer_load_dwordx4 {v(vMW+n)}, {s(SW,4)}, {s(sSoW)} offen lds"]
    return o
out += mdma(0, cA)
a("s_setprio 0")
out += sdbg()
a(f"v_lshrrev_b32 {v(T[0])}, 4, {L_}"); a(f"v_bfe_u32 {v(T[1])}, {L_}, 2, 2")
a(f"v_lshl_add_u32 {v(T[2])}, {v(T[0])}, 3, {v(T[1])}"); a(f"v_mul_u32_u24 {v(T[2])}, 384, {v(T[2])}")
a(f"v_and_b32 {v(T[4])}, 2, {v(T[1])}"); a(f"v_and_b32 {v(T[5])}, 1, {v(T[0])}"); a(f"v_lshl_or_b32 {v(T[4])}, {v(T[5])}, 2, {v(T[4])}")
a(f"v_bfe_u32 {v(T[5])}, {L_}, 1, 1"); a(f"s_lshl_b32 {s(t0)}, {s(sCg)}, 1"); a(f"v_add_u32 {v(T[5])}, {s(t0)}, {v(T[5])}"); a(f"v_xor_b32 {v(T[4])}, {v(T[4])}, {v(T[5])}")
a(f"v_lshl_add_u32 {v(T[2])}, {v(T[4])}, 4, {v(T[2])}"); a(f"v_and_b32 {v(T[5])}, 1, {L_}"); a(f"v_lshl_add_u32 {v(vWrB)}, {v(T[5])}, 3, {v(T[2])}")
a(f"v_and_b32 {v(T[1])}, 7, {L_}"); a(f"v_lshrrev_b32 {v(T[2])}, 1, {v(T[1])}"); a(f"v_and_b32 {v(T[2])}, 2, {v(T[2])}"); a(f"v_xor_b32 {v(T[2])}, {v(T[2])}, {v(T[0])}")
a(f"v_lshl_add_u32 {v(T[2])}, {v(T[1])}, 2, {v(T[2])}"); a(f"v_lshlrev_b32 {v(T[2])}, 4, {v(T[2])}")
a(f"v_bfe_u32 {v(T[4])}, {L_}, 3, 1"); a(f"v_lshl_add_u32 {v(T[2])}, {v(T[4])}, 10, {v(T[2])}")
a(f"v_add_u32 {v(vXr)}, {XB}, {v(T[2])}")
a(f"v_and_b32 {v(T[1])}, 15, {L_}"); a(f"v_min_u32 {v(T[2])}, 2, {v(T[1])}"); a(f"v_mul_u32_u24 {v(T[2])}, 1152, {v(T[2])}")
ZR = XB + 12288
if opts.get("zr", "0") == "1":
    a(f"v_mov_b32 {v(T[4])}, {ZR - XE}"); a(f"v_cmp_lt_u32 vcc, 2, {v(T[1])}"); a("s_nop 1"); a(f"v_cndmask_b32 {v(T[2])}, {v(T[2])}, {v(T[4])}, vcc")
a(f"v_lshl_add_u32 {v(T[2])}, {v(T[0])}, 4, {v(T[2])}"); a(f"v_add_u32 {v(vSB)}, {XE}, {v(T[2])}")
a(f"v_lshlrev_b32 {v(T[6])}, 3, {v(T[1])}"); a(f"v_add_u32 {v(T[6])}, {STATS}, {v(T[6])}")
a(f"v_mul_u32_u24 {v(T[7])}, {RS}, {v(T[1])}"); a(f"v_lshl_add_u32 {v(T[7])}, {v(T[0])}, 3, {v(T[7])}")
a(f"s_lshl_b32 {s(t0)}, {s(sCg)}, 5"); a(f"v_add_u32 {v(T[7])}, {s(t0)}, {v(T[7])}")
a(f"v_mov_b32 {v(vWr)}, {v(vWrB)}"); a(f"s_lshl_b32 {s(t0)}, {s(cA)}, 7"); a(f"v_add_u32 {v(vS)}, {s(t0)}, {v(vSB)}")
W1L = int(opts.get("w1l", "1"))
if W1L == 0: out += mdma(1, cB)
for i in range(84): a(f"v_mov_b32 {v(vAcc+i)}, 0")
if PRM: a(f"s_setprio {PRM}")
a(f"s_cmp_ge_u32 {s(sCg)}, 2"); a("s_cbranch_scc1 L_m3")
Gt = vE + 8; St = vE + 16; tm = vE + 20
for i in range(4): a(f"v_mov_b32 {v(St+i)}, 0")
a(f"v_lshlrev_b32 {v(T[4])}, 1, {v(vE+40)}"); a(f"v_add_u32 {v(T[4])}, {GF32}, {v(T[4])}"); a(f"v_add_u32 {v(T[5])}, {XE}, {v(vE+40)}")
a(f"s_waitcnt vmcnt({13 if W1L == 0 else 7})")
for d in range(4):
    a(f"v_lshlrev_b32 {v(Gt+2*d)}, 16, {v(vE+d)}"); a(f"v_and_b32 {v(Gt+2*d+1)}, {s(sMask)}, {v(vE+d)}")
a("s_mov_b32 exec_lo, -1"); a("s_mov_b32 exec_hi, 0xf")
a(f"ds_write_b128 {v(T[4])}, {v(Gt,4)}"); a(f"ds_write_b128 {v(T[4])}, {v(Gt+4,4)} offset:16")
a("s_mov_b64 exec, -1")
a(f"s_waitcnt vmcnt({12 if W1L == 0 else 6})")
p1, p2 = prep_valu(vE + 4, St, Gt, tm); out += p1 + p2
a("s_mov_b32 exec_lo, -1"); a("s_mov_b32 exec_hi, 0xf")
a(f"ds_write_b128 {v(T[5])}, {v(tm+8,4)}")
a("s_mov_b64 exec, -1")
a(f"v_add_f32 {v(St)}, {v(St)}, {v(St+1)}"); a(f"v_add_f32 {v(St+1)}, {v(St+2)}, {v(St+3)}"); a("s_nop 1")
for dp in ("quad_perm:[1,0,3,2]", "quad_perm:[2,3,0,1]", "row_half_mirror", "row_mirror"):
    a(f"v_add_f32_dpp {v(St)}, {v(St)}, {v(St)} {dp} row_mask:0xf bank_mask:0xf")
    a(f"v_add_f32_dpp {v(St+1)}, {v(St+1)}, {v(St+1)} {dp} row_mask:0xf bank_mask:0xf"); a("s_nop 1")
a(f"v_lshlrev_b32 {v(T[4])}, 3, {v(T[0])}"); a(f"s_lshl_b32 {s(t0)}, {s(sCg)}, 5"); a(f"s_add_u32 {s(t0)}, {s(t0)}, {XP}"); a(f"v_add_u32 {v(T[4])}, {s(t0)}, {v(T[4])}")
a(f"ds_write_b64 {v(T[4])}, {v(St,2)}")
a("s_waitcnt lgkmcnt(0)")
a("L_m3:")
if opts.get("zr", "0") == "1":
    a(f"s_cmp_lg_u32 {s(sCg)}, 3"); a("s_cbranch_scc1 L_nz")
    a(f"v_lshlrev_b32 {v(T[4])}, 4, {L_}"); a(f"v_add_u32 {v(T[4])}, {ZR}, {v(T[4])}"); a(f"ds_write_b128 {v(T[4])}, {v(vAcc,4)}"); a(f"ds_write_b128 {v(T[4])}, {v(vAcc,4)} offset:1024")
    a("L_nz:")
a(f"s_mov_b32 {s(sWb)}, 0"); a(f"s_mov_b32 {s(sI)}, 0")
ORD = [6, 0, 1, 2, 3, 4, 5]
def wreads(hh):
    wf = vWF + 12 * hh
    return [x for u in range(3) for x in (f"ds_read_b64_tr_b16 {v(wf+4*u,2)}, {v(vWr)} offset:{u*128 + hh*12288}", f"ds_read_b64_tr_b16 {v(wf+4*u+2,2)}, {v(vWr)} offset:{u*128 + hh*12288 + 1536}")]
def xread(hh, pos, slot=None):
    Tt = ORD[pos]; sl = pos if slot is None else slot
    if Tt == 6: return f"ds_read_b128 {v(vXF+4*sl,4)}, {v(vS)} offset:{hh*64}"
    return f"ds_read_b128 {v(vXF+4*sl,4)}, {v(vXr)} offset:{Tt*2048 + hh*512}"
def mf(hh, pos, slot=None):
    Tt = ORD[pos]; wf = vWF + 12 * hh; sl = pos if slot is None else slot
    return [f"v_mfma_f32_16x16x32_bf16 {v(vAcc+(Tt*3+u)*4,4)}, {v(wf+4*u,4)}, {v(vXF+4*sl,4)}, {v(vAcc+(Tt*3+u)*4,4)}" for u in range(3)]
def part_carry():
    W0 = wreads(0)
    o = []; pend = W0[:2] + [xread(0, 0)] + W0[2:] + [xread(0, p) for p in range(1, TC)]
    k = 0
    for pos in range(TC, 7):
        for x in mf(1, pos):
            n = 2 if k < 3 else 1
            o.append(x); o += pend[:n]; pend = pend[n:]; k += 1
        pend.append(xread(0, pos))
    return o + pend
def part_main(salu):
    o = []; pend = wreads(1); sl = list(salu)
    for pos in range(7):
        for x in mf(0, pos):
            o.append(x)
            if pend: o += pend[:1]; pend = pend[1:]
            o += sl[:1]; sl = sl[1:]
        pend.append(xread(1, pos))
    assert not sl
    pend = pend + [f"v_xor_b32 {v(vXr)}, {XS}, {v(vXr)}", f"v_add_u32 {v(vWr)}, {s(sWb)}, {v(vWrB)}", f"v_add_u32 {v(vS)}, 128, {v(vS)}"]
    for pos in range(TC):
        for x in mf(1, pos):
            o.append(x); o += pend[:1]; pend = pend[1:]
    return o + pend
if W1L == 1: out += mdma(1, cB)
a(f"s_waitcnt vmcnt({0 if W1L == 2 else 6})")
out += stamp(1)
out += BAR
out += stamp(2)
out += wreads(0) + [xread(0, p) for p in range(7)] + (mdma(1, cB) if W1L == 2 else []) + ["s_waitcnt lgkmcnt(0)", "s_branch L_mmid"]
a("L_mloop:")
a("s_waitcnt vmcnt(0)")
out += BAR
salu = wrap(sWb, WS, NWS * WS) + [f"s_add_u32 {s(sI)}, {s(sI)}, 1"]
body = auto_lgkm(part_carry() + ["L_mmid:"] + part_main(salu) + [f"s_cmp_lt_u32 {s(sI)}, 8", "s_cbranch_scc1 L_mloop"])
out += body
out += BAR
out += stamp(20)
fin = []
eR = vEe; dRs = vXF + 16
sRl = {6: 2, 0: 4, 1: 6, 2: 2, 3: 4, 4: 6, 5: 2}
M = []
pend = wreads(0) + [xread(0, 0), xread(0, 1), xread(0, 2)]
for pos in range(TC, 7):
    for x in mf(1, pos):
        M.append([x] + pend[:1]); pend = pend[1:]
pend = wreads(1) + [xread(1, 0, 3)]
seq = [(0, 0, 0), (0, 1, 1), (0, 2, 2), (1, 0, 3)]
after = {0: [xread(1, 1, 0)], 1: [xread(1, 2, 1)], 2: [xread(0, 3, 2)], 3: [xread(1, 3, 3)]}
seq += [(1, 1, 0), (1, 2, 1), (0, 3, 2), (1, 3, 3)]
after.update({4: [xread(0, 4, 0)], 5: [xread(1, 4, 1)], 6: [xread(0, 5, 2)], 7: [xread(1, 5, 3)]})
seq += [(0, 4, 0), (1, 4, 1), (0, 5, 2), (1, 5, 3)]
after.update({8: [xread(0, 6, 0)], 9: [xread(1, 6, 1)]})
seq += [(0, 6, 0), (1, 6, 1)]
done_at = {}
for i, (hh, pos, sl) in enumerate(seq):
    for x in mf(hh, pos, sl):
        M.append([x] + pend[:1]); pend = pend[1:]
    pend += after.get(i, [])
    if hh == 1: done_at[pos] = len(M)
assert not pend
def epi_tile(pos, pk):
    Tt = ORD[pos]; sR = sRl[Tt]; o = []
    for u in range(3):
        a_ = vAcc + (Tt * 3 + u) * 4
        if pk:
            for hf in range(2): o.append(f"v_pk_fma_f32 {v(vU+2*hf,2)}, {v(eR+4*u+2*hf,2)}, {v(sR,2)}, {v(dRs+4*u+2*hf,2)} op_sel:[0,1,0] op_sel_hi:[1,1,1]")
            for hf in range(2): o.append(f"v_pk_fma_f32 {v(vU+2*hf,2)}, {v(a_+2*hf,2)}, {v(sR,2)}, {v(vU+2*hf,2)} op_sel:[0,0,0] op_sel_hi:[1,0,1]")
        else:
            for j in range(4): o.append(f"v_fma_f32 {v(vU+j)}, {v(eR+4*u+j)}, {v(sR+1)}, {v(dRs+4*u+j)}")
            for j in range(4): o.append(f"v_fmac_f32 {v(vU+j)}, {v(a_+j)}, {v(sR)}")
        o.append(f"v_cvt_pk_bf16_f32 {v(a_)}, {v(vU)}, {v(vU+1)}"); o.append(f"v_cvt_pk_bf16_f32 {v(a_+1)}, {v(vU+2)}, {v(vU+3)}")
        o.append(f"ds_write_b64 {v(T[7])}, {v(a_,2)} offset:{Tt*16*RS + u*128}")
    if pos + 3 < 7: o.append(f"ds_read_b64 {v(sR,2)}, {v(T[6])} offset:{ORD[pos+3]*128}")
    if pos in (2, 4): o += BAR
    return o
dpp = []
for u in range(3):
    for j in range(4):
        dpp.append(f"v_mov_b32_dpp {v(eR+4*u+j)}, {v(vAcc+(18+u)*4+j)} row_newbcast:1 row_mask:0xf bank_mask:0xf")
        dpp.append(f"v_mov_b32_dpp {v(dRs+4*u+j)}, {v(vAcc+(18+u)*4+j)} row_newbcast:2 row_mask:0xf bank_mask:0xf")
E1POS = int(opts.get("e1pos", "36"))
NSH = int(opts.get("nsh", "1"))
LAG = 4
queue = []; nextpos = 0; started = False
for i, grp in enumerate(M):
    fin += grp
    if i + 1 == E1POS: fin += ["s_barrier"] + [f"ds_read_b64 {v(sRl[ORD[p]],2)}, {v(T[6])} offset:{ORD[p]*128}" for p in range(3)]
    if not started and i + 1 >= done_at[0] + LAG: queue += dpp; started = True
    while started and i + 1 >= E1POS and nextpos < NSH and i + 1 >= done_at[nextpos] + LAG and len(queue) < 40:
        queue += epi_tile(nextpos, False); nextpos += 1
    n = 0
    while queue and n < VPM:
        x = queue.pop(0); fin.append(x)
        if x.startswith("v_"): n += 1
fin += stamp(21)
fin += queue
if nextpos == 7 or len(queue) < 10: fin.append("s_nop 7")
pendw = []
for p in range(nextpos, 7):
    Tt = ORD[p]; sR = sRl[Tt]
    tm_ = vWF + 12 * (p % 2)
    seq_ = []
    for u in range(3):
        for hf in range(2): seq_.append(f"v_pk_fma_f32 {v(tm_+4*u+2*hf,2)}, {v(eR+4*u+2*hf,2)}, {v(sR,2)}, {v(dRs+4*u+2*hf,2)} op_sel:[0,1,0] op_sel_hi:[1,1,1]")
    for u in range(3):
        a_ = vAcc + (Tt * 3 + u) * 4
        for hf in range(2): seq_.append(f"v_pk_fma_f32 {v(tm_+4*u+2*hf,2)}, {v(a_+2*hf,2)}, {v(sR,2)}, {v(tm_+4*u+2*hf,2)} op_sel:[0,0,0] op_sel_hi:[1,0,1]")
    for i_, x in enumerate(seq_):
        fin.append(x)
        if i_ % 4 == 1 and pendw: fin.append(pendw.pop(0))
    if p + 3 < 7: fin.append(f"ds_read_b64 {v(sR,2)}, {v(T[6])} offset:{ORD[p+3]*128}")
    if p in (3, 5): fin += ([f"s_waitcnt lgkmcnt({1 if p + 3 < 7 else 0})", "s_barrier"])
    for u in range(3):
        a_ = vAcc + (Tt * 3 + u) * 4
        fin.append(f"v_cvt_pk_bf16_f32 {v(a_)}, {v(tm_+4*u)}, {v(tm_+4*u+1)}"); fin.append(f"v_cvt_pk_bf16_f32 {v(a_+1)}, {v(tm_+4*u+2)}, {v(tm_+4*u+3)}")
        w_ = f"ds_write_b64 {v(T[7])}, {v(a_,2)} offset:{Tt*16*RS + u*128}"
        if p == 6: fin.append(w_)
        else: pendw.append(w_)
assert nextpos <= 2
fin += stamp(22)
fin += BAR
fin += stamp(23)
out += auto_lgkm(fin)
a("L_fin:")
if PROF:
    out.extend(stamp(24)); A("s_waitcnt vmcnt(0)"); out.extend(stamp(25))
    A(f"s_mul_i32 s68, s2, {NWAVES}"); A(f"s_add_u32 s68, s68, {s(sWave)}"); A("s_lshl_b32 s68, s68, 8"); A("s_add_u32 s68, s68, 0x10000")
    A(f"v_lshlrev_b32 v3, 2, {L_}"); A(f"buffer_store_dword {v(vPr)}, v3, {s(SD,4)}, s68 offen")
if STAMP:
    A("s_waitcnt vmcnt(0)"); A("s_barrier"); A("s_memrealtime s[66:67]"); A("s_waitcnt lgkmcnt(0)")
    A(f"s_cmp_lg_u32 {s(sWave)}, 0"); A("s_cbranch_scc1 L_end")
    A("v_mov_b32 v4, s64"); A("v_mov_b32 v5, s65"); A("v_mov_b32 v6, s66"); A("v_mov_b32 v7, s67")
    A("s_lshl_b32 s68, s2, 4"); A("v_mov_b32 v3, s68"); A("s_mov_b64 exec, 1")
    A(f"buffer_store_dwordx4 v[4:7], v3, {s(SD,4)}, 0 offen")
A("L_end:"); A("s_endpgm")
A('.section .rodata,"a"'); A(".p2align 6"); A(f".amdhsa_kernel {NAME}")
nv = (max(NV, R.n) + 7) // 8 * 8
A(f"  .amdhsa_next_free_vgpr {nv}"); A("  .amdhsa_next_free_sgpr 72"); A(f"  .amdhsa_accum_offset {nv}")
A("  .amdhsa_group_segment_fixed_size 0"); A("  .amdhsa_kernarg_size 56"); A("  .amdhsa_user_sgpr_count 2")
A("  .amdhsa_user_sgpr_kernarg_segment_ptr 1"); A("  .amdhsa_system_sgpr_workgroup_id_x 1"); A(".end_amdhsa_kernel")
NOBAR = opts.get("nobar", "0") == "1"
if NOBAR:
    new = []; act = False
    for x in out:
        if not x: continue
        if x.startswith("L_loopP") or x.startswith("L_mloop"): act = True
        if act and x.startswith("s_cbranch_scc1 L_"): act = False
        if act and x == "s_barrier":
            if x_prev_label_m(new): new.append(f"s_cmp_eq_u32 {s(sI)}, 1"); new.append("s_cbranch_scc0 L_nb"); new.append(x); new.append("L_nb:")
            continue
        new.append(x)
    out = new
FINE = opts.get("fine", "0") == "1"
if FINE:
    new = []; active = False; idx = 0; cnt = 0; lab = 0
    def mark():
        global idx
        if idx < 15:
            new.append(f"s_memtime s[{72+2*idx}:{73+2*idx}]"); idx += 1
    for x in out:
        if not x: continue
        if x.startswith("L_loopP"):
            active = "P"; idx = 0; cnt = 0; new.append(x); mark(); continue
        if x.startswith("L_mloop"):
            active = "M0"; new.append(x); continue
        if active == "M0" and x == "s_barrier":
            new.append(x); lab += 1
            new += [f"s_cmp_eq_u32 {s(sI)}, 4", f"s_cbranch_scc0 L_nf{lab}"] + [f"v_writelane_b32 {v(vPr)}, s{72+2*i}, {30+i}" for i in range(15)] + [f"L_nf{lab}:"]
            active = "M"; idx = 0; cnt = 0; mark(); continue
        if active == "M":
            if x.startswith("v_mfma"):
                cnt += 1
                if cnt % 3 == 1 and cnt > 1: mark()
            if x.startswith("s_cmp_lt_u32"): mark(); active = False
        if active == "P":
            if x.startswith("ds_write_b128") or x.startswith("s_waitcnt vmcnt") or x.startswith("buffer_load_dwordx4 v["):
                mark(); new.append(x); mark(); continue
            if x == "s_waitcnt lgkmcnt(0)": mark()
            if x == "s_barrier":
                mark(); new.append(x); new.append("s_waitcnt lgkmcnt(0)")
                new += [f"v_writelane_b32 {v(vPr)}, s{72+2*i}, {30+i}" for i in range(idx)]
                active = False; continue
        new.append(x)
    out = [x.replace("next_free_sgpr 72", "next_free_sgpr 102") for x in new]
txt = "\n".join(x for x in out if x)
if "CPFN" in txt:
    import subprocess, tempfile, os, re as _re
    open("_g.s", "w").write(txt.replace("CPFN", "1"))
    subprocess.run(["clang", "-x", "assembler", "-target", "amdgcn-amd-amdhsa", "-mcpu=gfx950", "-c", "_g.s", "-o", "_g.o"], check=True)
    d = subprocess.run(["llvm-objdump", "-d", "--mcpu=gfx950", "_g.o"], capture_output=True, text=True).stdout.strip().split("\n")[-1]
    size = int(_re.search(r"// ([0-9A-F]+):", d).group(1), 16) + 4
    n = min(64, max(0, (size - 8192) // 128))
    assert size >= 8192
    txt = txt.replace("CPFN", str(n))
print(txt)
```

```python
import sys
from asmlib import *
opts = dict(a.split("=") for a in sys.argv[1:] if "=" in a)
XNT = opts.get("xnt", "1") == "1"
ROT = False
ROT2 = False
STAMP = opts.get("stamp", "0") == "1"
ONT = opts.get("ont", "1") == "1"
PROF = opts.get("prof", "0") in ("1", "2")
DENS = int(opts.get("dens", "3"))
PR2 = int(opts.get("pr2", "2")); PRL = int(opts.get("prl", "2")); PRM = int(opts.get("prm", "3")); PR1 = int(opts.get("pr1", "1")); LOW = int(opts.get("low", "0")); PRS = int(opts.get("prs", "3")); PH = opts.get("ph", "3"); LATE = int(opts.get("late", "0"))
WPOS = [float(x) for x in opts.get("wpos", "0.0,0.5").split(",")]
VPM = int(opts.get("vpm", "2"))
TC = 3
MFIRST = opts.get("mfirst", "0") == "1"
W2M = False
if PROF: STAMP = True
NAME = "standalone__layernorm_linear__sampling_kernel"
NWAVES = 12
WS = 24576; NWS = 5; XS = 16384; XB = 131072
GF32 = NWS * WS; XE = GF32 + 2304; GBF = XE + 1152; BBF = GBF + 1152; STATS = BBF + 1152; XP = STATS + 896
assert XP + 64 <= XB
LDSB = XB + XS + 12288
RS = int(opts.get("rs", "408"))
out = []
A = out.append; a = A
def x_prev_label_m(new): return any(y == "L_mloop:" for y in new[-4:])
hdr = open("standalone__layernorm_linear__sampling.s.ref").read().split("; Override launch")[0]
A(hdr.rstrip())
A(f"; @launch grid=(256,1,1) block=({NWAVES*64},1,1) lds={LDSB}")
A('.amdgcn_target "amdgcn-amd-amdhsa--gfx950"')
A(".text"); A(f".globl {NAME}"); A(".p2align 8"); A(f".type {NAME},@function"); A(f"{NAME}:")
SX, SW, SG, SB, SO = 16, 20, 24, 28, 32
sWave, sRb, sCs, sCg = 36, 37, 38, 39
cc = [40, 41, 42]
cA, cB, cC = cc
sI = 43
sWb = 44; sOob = 45
t0, t1, t2, t3 = 48, 49, 51, 52
sMask = 50
sSo = 58; sM = 59; sG0 = 47; sSoW = 57
SD = 60
vLane = 1; vT = 2; T = [vT + i for i in range(8)]
vPr = 10
L_ = v(vLane)
def stamp(idx):
    if not PROF: return []
    return ["s_memtime s[70:71]", "s_waitcnt lgkmcnt(0)", f"v_writelane_b32 {v(vPr)}, s70, {idx}"]
BAR = ["s_waitcnt lgkmcnt(0)", "s_barrier"]

if STAMP: A("s_memrealtime s[64:65]")
A("s_cmp_ge_u32 s2, 255"); A("s_cbranch_scc1 L_end")
A("s_load_dwordx8 s[4:11], s[0:1], 0")
A("s_load_dwordx2 s[12:13], s[0:1], 32")
if STAMP: A(f"s_load_dwordx2 s[14:15], s[0:1], 48")
A(f"v_lshrrev_b32 {v(vT)}, 6, v0"); A(f"v_and_b32 {v(vLane)}, 63, v0")
A(f"s_and_b32 {s(t0)}, s2, 7"); A(f"s_lshl_b32 {s(t0)}, {s(t0)}, 5"); A(f"s_lshr_b32 {s(t1)}, s2, 3"); A(f"s_add_u32 {s(t0)}, {s(t0)}, {s(t1)}")
A(f"v_readfirstlane_b32 {s(sWave)}, {v(vT)}")
A(f"s_mul_i32 {s(sRb)}, {s(t0)}, 21846"); A(f"s_lshr_b32 {s(sRb)}, {s(sRb)}, 16")
A(f"s_mul_i32 {s(t1)}, {s(sRb)}, 3"); A(f"s_sub_u32 {s(sCs)}, {s(t0)}, {s(t1)}")
A(f"s_and_b32 {s(sCg)}, {s(sWave)}, 3")
if MFIRST: A(f"s_add_u32 {s(sWave)}, {s(sWave)}, 8"); A(f"s_cmp_ge_u32 {s(sWave)}, 12"); A(f"s_cselect_b32 {s(t2)}, 12, 0"); A(f"s_sub_u32 {s(sWave)}, {s(sWave)}, {s(t2)}")
A(f"s_mov_b32 {s(sMask)}, 0xffff0000")
CPF = int(opts.get("cpf", "0"))
if CPF:
    A(f"s_cmp_lg_u32 {s(sWave)}, {CPF}"); A("s_cbranch_scc1 L_nocpf")
    A("s_getpc_b64 s[54:55]"); A("s_and_b32 s54, s54, 0xffffff00")
    A(f"v_lshlrev_b32 {v(T[1])}, 7, {L_}"); A(f"v_mov_b32 {v(T[3])}, s55"); A(f"v_add_co_u32 {v(T[2])}, vcc, s54, {v(T[1])}"); A("s_nop 1"); A(f"v_addc_co_u32 {v(T[3])}, vcc, 0, {v(T[3])}, vcc")
    A(f"global_load_dword v166, {v(T[2],2)}, off")
    A(f"v_add_co_u32 {v(T[2])}, vcc, 0x2000, {v(T[2])}"); A("s_nop 1"); A(f"v_addc_co_u32 {v(T[3])}, vcc, 0, {v(T[3])}, vcc")
    A("v_cmp_gt_u32 vcc, CPFN, v1"); A("s_and_saveexec_b64 s[56:57], vcc")
    A(f"global_load_dword v167, {v(T[2],2)}, off"); A("s_mov_b64 exec, -1")
    A("L_nocpf:")
if ROT:
    A(f"s_mul_i32 {s(t0)}, {s(sRb)}, 21846"); A(f"s_lshr_b32 {s(t0)}, {s(t0)}, 16")
    A(f"s_mul_i32 {s(t1)}, {s(t0)}, 3"); A(f"s_sub_u32 {s(t1)}, {s(sRb)}, {s(t1)}")
    A(f"s_mul_i32 {s(t2)}, {s(t0)}, 21846"); A(f"s_lshr_b32 {s(t2)}, {s(t2)}, 16"); A(f"s_mul_i32 {s(t2)}, {s(t2)}, 3"); A(f"s_sub_u32 {s(t0)}, {s(t0)}, {s(t2)}")
    A(f"s_mul_i32 {s(t0)}, {s(t0)}, 3")
    A(f"s_add_u32 {s(t1)}, {s(t1)}, {s(sCs)}")
    for k, cr in enumerate(cc):
        if k: A(f"s_add_u32 {s(t1)}, {s(t1)}, 1")
        A(f"s_cmp_ge_u32 {s(t1)}, 3"); A(f"s_cselect_b32 {s(t2)}, 3, 0"); A(f"s_sub_u32 {s(t1)}, {s(t1)}, {s(t2)}")
        A(f"s_add_u32 {s(cr)}, {s(t0)}, {s(t1)}")
elif ROT2:
    A(f"s_mov_b32 {s(cA)}, {s(sCs)}"); A(f"s_add_u32 {s(cB)}, {s(sCs)}, 1"); A(f"s_cmp_ge_u32 {s(cB)}, 3"); A(f"s_cselect_b32 {s(cB)}, 0, {s(cB)}")
    A(f"s_add_u32 {s(cC)}, {s(cB)}, 1"); A(f"s_cmp_ge_u32 {s(cC)}, 3"); A(f"s_cselect_b32 {s(cC)}, 0, {s(cC)}")
else:
    A(f"s_mov_b32 {s(cA)}, 0"); A(f"s_mov_b32 {s(cB)}, 1"); A(f"s_mov_b32 {s(cC)}, 2")
def rot_c():
    return [f"s_add_u32 {s(t2)}, {s(cA)}, 3", f"s_cmp_ge_u32 {s(t2)}, 9", f"s_cselect_b32 {s(t1)}, 9, 0", f"s_sub_u32 {s(t2)}, {s(t2)}, {s(t1)}",
            f"s_mov_b32 {s(cA)}, {s(cB)}", f"s_mov_b32 {s(cB)}, {s(cC)}", f"s_mov_b32 {s(cC)}, {s(t2)}"]
def adv3(c):
    return [f"s_add_u32 {s(c)}, {s(c)}, 3", f"s_cmp_ge_u32 {s(c)}, 9", f"s_cselect_b32 {s(t1)}, 9, 0", f"s_sub_u32 {s(c)}, {s(c)}, {s(t1)}"]
def wrap(reg, inc, lim, base=0):
    return [f"s_add_u32 {s(reg)}, {s(reg)}, {inc}", f"s_cmp_ge_u32 {s(reg)}, {lim}", f"s_cselect_b32 {s(reg)}, {base}, {s(reg)}"]
def srd(d):
    r, p, nb = d
    return [f"s_mov_b32 {s(r)}, {s(p)}", f"s_mov_b32 {s(r+1)}, {s(p+1)}", f"s_mov_b32 {s(r+2)}, {nb}", f"s_mov_b32 {s(r+3)}, 0x20000"]
def srds(lst):
    o = ["s_waitcnt lgkmcnt(0)"] + stamp(0)
    for d in lst: o += srd(d)
    return o
def sdbg():
    return [f"s_mov_b32 {s(SD)}, s14", f"s_mov_b32 {s(SD+1)}, s15", f"s_mov_b32 {s(SD+2)}, 0x100000", f"s_mov_b32 {s(SD+3)}, 0x20000"] if STAMP else []
dX, dG, dB, dW, dO = (SX, 4, 9437184), (SG, 6, 1152), (SB, 8, 1152), (SW, 10, 663552), (SO, 12, 9437184)
xnt = {"1": " nt", "0": "", "2": " sc0 sc1 nt"}[opts.get("xnt", "2")]
ont = {"1": " nt", "0": "", "2": " sc0 sc1 nt", "3": " sc1 nt"}[opts.get("ont", "1")]
A(f"s_cmp_ge_u32 {s(sWave)}, 8"); A("s_cbranch_scc1 L_mfma")

def prep_valu(raw, st, G, tm):
    p1 = []; p2 = []
    for d in range(4):
        lo, hi = tm + 2 * d, tm + 2 * d + 1
        p1 += [f"v_lshlrev_b32 {v(lo)}, 16, {v(raw+d)}", f"v_and_b32 {v(hi)}, {s(sMask)}, {v(raw+d)}",
               f"v_add_f32 {v(st)}, {v(st)}, {v(lo)}", f"v_add_f32 {v(st+1)}, {v(st+1)}, {v(hi)}",
               f"v_fmac_f32 {v(st+2)}, {v(lo)}, {v(lo)}", f"v_fmac_f32 {v(st+3)}, {v(hi)}, {v(hi)}"]
        p2 += [f"v_mul_f32 {v(lo)}, {v(lo)}, {v(G+2*d)}", f"v_mul_f32 {v(hi)}, {v(hi)}, {v(G+2*d+1)}", f"v_cvt_pk_bf16_f32 {v(tm+8+d)}, {v(lo)}, {v(hi)}"]
    return p1, p2

R = Regs(11)
vWd = R.alloc("wd", 6); vXd = R.alloc("xd"); vPB_ = R.alloc("pb"); vP = R.alloc("p")
vSa = R.alloc("sa", 6)
vGB = R.alloc("gb"); vG = R.alloc("g")
vSt = R.alloc("stats", 8, 4); vGq = R.alloc("gq", 8, 4); vTm = R.alloc("tmp", 24, 4); vY = R.alloc("y", 4, 2); vPk = R.alloc("pk", 8, 4); vRaw = R.alloc("raw", 72, 4); vRes = R.alloc("res", 4, 2); vG0 = R.alloc("g0", 8, 4); vXa = R.alloc("xa", 2); vSh = R.alloc("sh", 2, 2)
vPf = vWd
assert vSa == 20
a(f"s_lshl_b32 {s(t0)}, {s(sCg)}, 1"); a(f"s_add_u32 {s(t1)}, {s(sCg)}, 8"); a(f"s_cmp_ge_u32 {s(sWave)}, 4"); a(f"s_cselect_b32 {s(sG0)}, {s(t0)}, {s(t1)}")
a(f"v_lshrrev_b32 {v(T[0])}, 3, {L_}"); a(f"v_and_b32 {v(T[0])}, 2, {v(T[0])}"); a(f"v_and_b32 {v(T[1])}, 3, {L_}"); a(f"v_xor_b32 {v(T[0])}, {v(T[0])}, {v(T[1])}")
a(f"v_lshrrev_b32 {v(T[1])}, 5, {L_}"); a(f"v_lshl_add_u32 {v(T[0])}, {v(T[1])}, 2, {v(T[0])}"); a(f"v_bfe_u32 {v(T[1])}, {L_}, 2, 3"); a(f"v_lshlrev_b32 {v(T[3])}, 4, {v(T[0])}")
a(f"s_mul_i32 {s(t0)}, {s(sRb)}, 12"); a(f"s_add_u32 {s(t0)}, {s(t0)}, {s(sG0)}"); a(f"s_mul_i32 {s(t0)}, {s(t0)}, 9216")
a(f"v_mul_u32_u24 {v(T[2])}, 1152, {v(T[1])}"); a(f"v_add3_u32 {v(vXd)}, {v(T[2])}, {v(T[3])}, {s(t0)}")
a(f"s_mov_b32 {s(sOob)}, 0")
a(f"s_cmp_ge_u32 {s(sWave)}, 4"); a("s_cbranch_scc1 L_p2")
a(f"s_cmp_ge_u32 {s(sWave)}, 2"); a("s_cbranch_scc1 L_p1")

def xload(ng, buf, creg, tag, oob=False):
    o = [f"s_lshl_b32 {s(sSo)}, {s(creg)}, 7"]
    if oob: o.append(f"s_or_b32 {s(sSo)}, {s(sSo)}, {s(sOob)}")
    for g in range(ng):
        if g: o.append(f"s_add_u32 {s(sSo)}, {s(sSo)}, 9216")
        o.append(f"buffer_load_dwordx4 {v(vRaw+(buf*2+g)*4,4)}, {v(vXd)}, {s(SX,4)}, {s(sSo)} offen{xnt} ;#{tag}")
    return o
def wdma_units(creg, tag, oob=False):
    u = []
    for n in range(12):
        pre = []
        if n == 0:
            pre = [f"s_mul_i32 {s(sSoW)}, {s(creg)}, 73728"] + ([f"s_or_b32 {s(sSoW)}, {s(sSoW)}, {s(sOob)}"] if oob else [])
        elif n == 6: pre = [f"s_add_u32 {s(sSoW)}, {s(sSoW)}, {16*1152}"]
        u.append(pre + [f"s_add_u32 m0, {s(sM)}, {n*1024}", "DELAY", f"buffer_load_dwordx4 {v(vWd+n%6)}, {s(SW,4)}, {s(sSoW)} offen lds ;#{tag}"])
    u[-1] += [f"s_add_u32 {s(sM)}, {s(sM)}, {WS}", f"s_cmp_ge_u32 {s(sM)}, {NWS*WS}", f"s_cselect_b32 s56, {NWS*WS}, 0", f"s_sub_u32 {s(sM)}, {s(sM)}, s56"]
    return u
def weave(valu, units, dens=None):
    o = []; n = len(valu); k = len(units); iv = 0
    for j, u in enumerate(units):
        tgt = min(n, (n * j) // k if dens is None else j * dens)
        o += valu[iv:tgt]; iv = max(iv, tgt)
        for x in u:
            if x == "DELAY":
                if iv < n and valu[iv].startswith("v_"): o.append(valu[iv]); iv += 1
                else: o.append("s_nop 0")
            else: o.append(x)
    o += valu[iv:]
    return o
def prep_setup():
    o = []; a = o.append
    a(f"v_lshlrev_b32 {v(vGB)}, 5, {v(T[0])}"); a(f"v_add_u32 {v(vGB)}, {GF32}, {v(vGB)}")
    a(f"s_lshl_b32 {s(t0)}, {s(sG0)}, 10"); a(f"s_add_u32 {s(t0)}, {s(t0)}, {XB}"); a(f"v_lshlrev_b32 {v(T[2])}, 4, {L_}"); a(f"v_add_u32 {v(vP)}, {s(t0)}, {v(T[2])}")
    for i in range(8): a(f"v_mov_b32 {v(vSt+i)}, 0")
    return o
def store_setup():
    o = []; a = o.append
    a(f"s_mul_i32 {s(t0)}, {s(sRb)}, {96*1152}"); a(f"s_mul_i32 {s(t1)}, {s(sCs)}, 384"); a(f"s_add_u32 {s(t0)}, {s(t0)}, {s(t1)}")
    a(f"s_mul_i32 {s(t3)}, {s(sWave)}, 9216"); a(f"s_add_u32 {s(t0)}, {s(t0)}, {s(t3)}"); a(f"s_mul_i32 {s(t3)}, {s(sWave)}, {8*RS}")
    for n in range(3):
        a(f"v_add_u32 {v(T[4])}, {n*64}, {L_}")
        a(f"v_mul_u32_u24 {v(T[5])}, 2731, {v(T[4])}"); a(f"v_lshrrev_b32 {v(T[5])}, 16, {v(T[5])}")
        a(f"v_mul_u32_u24 {v(T[6])}, 24, {v(T[5])}"); a(f"v_sub_u32 {v(T[4])}, {v(T[4])}, {v(T[6])}"); a(f"v_lshlrev_b32 {v(T[4])}, 4, {v(T[4])}")
        a(f"v_mul_u32_u24 {v(T[6])}, {RS}, {v(T[5])}"); a(f"v_add3_u32 v{20+n}, {v(T[6])}, {v(T[4])}, {s(t3)}")
        a(f"v_mul_u32_u24 {v(T[6])}, 1152, {v(T[5])}"); a(f"v_add3_u32 v{23+n}, {v(T[6])}, {v(T[4])}, {s(t0)}")
    a(f"v_lshlrev_b32 {v(T[4])}, 4, {L_}"); a(f"v_add_u32 {v(vXa)}, {96*RS}, {v(T[4])}")
    a(f"s_add_u32 {s(t2)}, {s(sRb)}, 8160"); a(f"s_mul_i32 {s(t2)}, {s(t2)}, 1152"); a(f"s_add_u32 {s(t2)}, {s(t2)}, {s(t1)}")
    a(f"v_add_u32 {v(T[4])}, {s(t2)}, {v(T[4])}"); a(f"v_mov_b32 {v(T[5])}, 0x40000000"); a(f"v_cmp_gt_u32 vcc, 24, {L_}"); a("s_nop 1"); a(f"v_cndmask_b32 {v(vXa+1)}, {v(T[5])}, {v(T[4])}, vcc")
    return o
def gload(creg, dst, tag):
    return [f"s_lshl_b32 {s(t0)}, {s(creg)}, 7", f"buffer_load_dwordx4 {v(dst,4)}, {v(T[3])}, {s(SG,4)}, {s(t0)} offen ;#{tag}"]
def gunpack(src):
    o = []
    for d in range(4): o += [f"v_lshlrev_b32 {v(vGq+2*d)}, 16, {v(src+d)}", f"v_and_b32 {v(vGq+2*d+1)}, {s(sMask)}, {v(src+d)}"]
    return o
def shift_calc(ng):
    o = []; a = o.append
    for g in range(ng):
        tm = vTm + 8 * g; r = vSh + g; q = vY + g
        a(f"v_add_f32 {v(r)}, {v(tm)}, {v(tm+1)}"); a(f"v_add_f32 {v(q)}, {v(tm+2)}, {v(tm+3)}")
        a(f"v_add_f32 {v(r)}, {v(r)}, {v(tm+4)}"); a(f"v_add_f32 {v(q)}, {v(q)}, {v(tm+5)}")
        a(f"v_add_f32 {v(r)}, {v(r)}, {v(tm+6)}"); a(f"v_add_f32 {v(q)}, {v(q)}, {v(tm+7)}"); a(f"v_add_f32 {v(r)}, {v(r)}, {v(q)}")
    for qp in ("[1,0,3,2]", "[2,3,0,1]"):
        a("s_nop 1")
        for g in range(ng): a(f"v_add_f32_dpp {v(vSh+g)}, {v(vSh+g)}, {v(vSh+g)} quad_perm:{qp} row_mask:0xf bank_mask:0xf")
    for g in range(ng): a(f"v_mov_b32 {v(vY+g)}, {v(vSh+g)}")
    a("s_nop 1")
    for g in range(ng): a(f"v_permlane32_swap_b32 {v(vSh+g)}, {v(vY+g)}")
    a("s_nop 1")
    for g in range(ng): a(f"v_add_f32 {v(vSh+g)}, {v(vSh+g)}, {v(vY+g)}")
    for g in range(ng): a(f"v_mul_f32 {v(vSh+g)}, 0x3c800000, {v(vSh+g)}")
    for g in range(ng): a(f"v_cvt_pk_bf16_f32 {v(vSh+g)}, {v(vSh+g)}, {v(vSh+g)}")
    for g in range(ng): a(f"v_and_b32 {v(vSh+g)}, {s(sMask)}, {v(vSh+g)}")
    return o
def parts(ng, buf):
    un = []; sc = []; stt = []; sub = []
    for g in range(ng):
        raw = vRaw + (buf * 2 + g) * 4; st = vSt + 4 * g; tm = vTm + 8 * g; y = vY; pk = vPk + 4 * g
        for d in range(4):
            lo, hi = tm + 2 * d, tm + 2 * d + 1
            un += [f"v_lshlrev_b32 {v(lo)}, 16, {v(raw+d)}", f"v_and_b32 {v(hi)}, {s(sMask)}, {v(raw+d)}"]
            sub += [f"v_sub_f32 {v(lo)}, {v(lo)}, {v(vSh+g)}", f"v_sub_f32 {v(hi)}, {v(hi)}, {v(vSh+g)}"]
            sc += [f"v_mul_f32 {v(y+2*(d%2))}, {v(lo)}, {v(vGq+2*d)}", f"v_mul_f32 {v(y+2*(d%2)+1)}, {v(hi)}, {v(vGq+2*d+1)}", f"v_cvt_pk_bf16_f32 {v(pk+d)}, {v(y+2*(d%2))}, {v(y+2*(d%2)+1)}"]
            stt += [f"v_add_f32 {v(st)}, {v(st)}, {v(lo)}", f"v_add_f32 {v(st+1)}, {v(st+1)}, {v(hi)}", f"v_fmac_f32 {v(st+2)}, {v(lo)}, {v(lo)}", f"v_fmac_f32 {v(st+3)}, {v(hi)}, {v(hi)}"]
        sc.append(f"ds_write_b128 {v(vP)}, {v(pk,4)} offset:{g*1024}")
    if buf == 0: un = un + shift_calc(ng)
    return un + sub, sc, stt
def resolve_vm(seq):
    q = []; res = {}
    for x in seq:
        if x.startswith("WAITVM"):
            tags, wid = x[7:].split("@"); tags = tags.split(",")
            last = max([i for i, t in enumerate(q) if t in tags], default=-1)
            n = len(q) - 1 - last if last >= 0 else 63
            res[wid] = min(res.get(wid, 63), n)
        elif ";#" in x: q.append(x.split(";#")[1])
    return res
XS_ = opts.get("xs", "r"); WL = int(opts.get("wl", "1"))
XSCHED = {"a": {1: [2, 3, 4], 2: [5], 3: [6], 4: [7], 5: [8]},
          "b": {1: [2, 3, 4, 5], 2: [6, 7], 3: [8]},
          "c": {1: [2, 3, 4, 5, 6, 7, 8]},
          "d": {0: [2, 3], 1: [4, 5], 2: [6, 7], 3: [8]},
          "e": {1: [2, 3], 2: [4, 5], 3: [6, 7], 4: [8]},
          "r": {1: [2, 3], 2: [4], 3: [5], 4: [6], 5: [7], 6: [8]}}[XS_]
WSCHED = {2: {1: [2, 3], 2: [4], 3: [5], 4: [6], 5: [7], 6: [8]}, 3: {1: [2, 3], 2: [4, 5], 3: [6], 4: [7], 5: [8]}, 4: {1: [2, 3, 4], 2: [5], 3: [6], 4: [7], 5: [8]},
          1: {1: [2], 2: [3], 3: [4], 4: [5], 5: [6], 6: [7], 7: [8]}, 5: {1: [2], 2: [3], 3: [4, 5], 4: [6], 5: [7], 6: [8]}}[WL]
def xl(ng, c):
    return [f"buffer_load_dwordx4 {v(vRaw+(c*2+g)*4,4)}, {v(vXd)}, {s(SX,4)}, {s(sSo) if g else 0} offen offset:{c*128}{xnt} ;#x{c}" for g in range(ng)]
def wu(c):
    u = []
    for n in range(12):
        pre = [f"s_mov_b32 {s(sSoW)}, {c*73728 + (n//6)*16*1152}"] if n % 6 == 0 else []
        u.append(pre + [f"s_add_u32 m0, {s(sM)}, {(c%NWS)*WS + n*1024}", "DELAY", f"buffer_load_dwordx4 {v(vWd+n%6)}, {s(SW,4)}, {s(sSoW)} offen lds ;#W{c}"])
    return u
PFW = opts.get("pfw", "0") == "1"; PFX = opts.get("pfx", "0") == "1"
PFXS = {"a": {-1: [3], 0: [5], 2: [7]}, "b": {-1: [3, 5], 1: [7]}, "c": {-1: [3, 5, 7]}, "d": {0: [5], 2: [7]}, "f": {j: [j + 4] for j in range(0, 5)}, "g": {j: [j + 3] for j in range(1, 6)}}[opts.get("pfxs", "a")]
def pf_setup():
    o = []; a = o.append
    a(f"s_mul_i32 {s(t0)}, {s(sRb)}, 96"); a(f"s_lshl_b32 {s(t1)}, {s(sCs)}, 5"); a(f"s_add_u32 {s(t0)}, {s(t0)}, {s(t1)}"); a(f"s_mul_i32 {s(t0)}, {s(t0)}, 1152")
    a(f"s_cmp_eq_u32 {s(sWave)}, 2"); a(f"s_cselect_b32 {s(t0)}, {s(t0)}, 0x40000000")
    a(f"v_and_b32 {v(T[4])}, 31, {L_}"); a(f"v_mul_u32_u24 {v(T[4])}, 1152, {v(T[4])}"); a(f"v_lshrrev_b32 {v(T[5])}, 5, {L_}"); a(f"v_lshl_add_u32 {v(T[4])}, {v(T[5])}, {30 if opts.get('pfxs') in ('f', 'g') else 7}, {v(T[4])}"); a(f"v_add_u32 {v(vPf)}, {s(t0)}, {v(T[4])}")
    a(f"s_lshr_b32 {s(t0)}, s2, 3"); a(f"s_mul_i32 {s(t0)}, {s(t0)}, {18*128}")
    a(f"s_cmp_eq_u32 {s(sWave)}, 3"); a(f"s_cselect_b32 {s(t0)}, {s(t0)}, 0x40000000")
    a(f"v_mul_u32_u24 {v(T[4])}, 3641, {L_}"); a(f"v_lshrrev_b32 {v(T[4])}, 16, {v(T[4])}"); a(f"v_mul_u32_u24 {v(T[5])}, 18, {v(T[4])}"); a(f"v_sub_u32 {v(T[5])}, {L_}, {v(T[5])}")
    a(f"v_mul_u32_u24 {v(T[4])}, 73728, {v(T[4])}"); a(f"v_lshl_add_u32 {v(T[4])}, {v(T[5])}, 7, {v(T[4])}"); a(f"v_add_u32 {v(T[4])}, {s(t0)}, {v(T[4])}")
    a(f"v_mov_b32 {v(T[5])}, 0x40000000"); a(f"v_cmp_gt_u32 vcc, {18*PFN}, {L_}"); a("s_nop 1"); a(f"v_cndmask_b32 {v(vPf+1)}, {v(T[5])}, {v(T[4])}, vcc")
    o += srd(dW)
    return o
PFN = int(opts.get("pfn", "2"))
PFWS = {"a": {-1: [2], 0: [4], 2: [6], 3: [8]}, "b": {-1: [2], 0: [4], 1: [6], 2: [8]}, "c": {0: [3], 1: [5], 2: [7]}, "d": {-1: [3], 1: [6]}, "f": {j: [j + 3] for j in range(-1, 6)}, "g": {j: [j + 2] for j in range(0, 7)}}[opts.get("pfws", "a")]
def pfx(j):
    o = [f"buffer_load_dword {v(vPf+2)}, {v(vPf)}, {s(SX,4)}, 0 offen offset:{c*128}{xnt} ;#pf" for c in PFXS.get(j, [])] if PFX else []
    if PFW:
        for c in PFWS.get(j, []): o += [f"s_mov_b32 {s(sSoW)}, {c*73728}", f"buffer_load_dword {v(vPf+2)}, {v(vPf+1)}, {s(SW,4)}, {s(sSoW)} offen ;#pf"]
    return o
def interval(role, j):
    ng = 2 if role == "P2" else 1
    nW = role == "PL"
    wid = f"{role}{j}"
    hi = {"PL": PRL, "P2": PR2, "P1": PR1}[role]
    un, sc, stt = parts(ng, j)
    sc = [(x.rsplit("offset:", 1)[0] + f"offset:{int(x.rsplit('offset:', 1)[1]) + (j%2)*XS}") if x.startswith("ds_write") else x for x in sc]
    gnext = [f"ds_read_b128 {v(vGq,4)}, {v(vGB)} offset:{(j+1)*256}", f"ds_read_b128 {v(vGq+4,4)}, {v(vGB)} offset:{(j+1)*256+16}"] if j < 8 else []
    loads = [x for c in XSCHED.get(j, []) for x in xl(ng, c)] + (pfx(j) if role == "P1" else [])
    o = [f"s_setprio {hi}"] if hi else []
    if j == 0:
        un0 = [x for x in un if not x.startswith("v_sub_f32")]
        pk = []; st_ = []
        for g in range(ng):
            tm = vTm + 8 * g; st = vSt + 4 * g; yy = vRaw + 64; pkd = vPk + 4 * g
            for d in range(4): pk.append(f"v_pk_add_f32 {v(tm+2*d,2)}, {v(tm+2*d,2)}, {v(vSh,2)} op_sel:[0,{g}] op_sel_hi:[1,{g}] neg_lo:[0,1] neg_hi:[0,1]")
            for d in range(4): pk.append(f"v_pk_mul_f32 {v(yy+2*d,2)}, {v(tm+2*d,2)}, {v(vGq+2*d,2)}")
            for d in range(4): pk.append(f"v_cvt_pk_bf16_f32 {v(pkd+d)}, {v(yy+2*d)}, {v(yy+2*d+1)}")
            pk.append(f"ds_write_b128 {v(vP)}, {v(pkd,4)} offset:{g*1024}")
            for d in range(4): st_ += [f"v_pk_add_f32 {v(st,2)}, {v(st,2)}, {v(tm+2*d,2)}", f"v_pk_fma_f32 {v(st+2,2)}, {v(tm+2*d,2)}, {v(tm+2*d,2)}, {v(st+2,2)}"]
        return o + [f"WAITVM x0,g0@{wid}"] + gunpack(vG0) + un0 + pk + st_ + loads + BAR
    PKS = opts.get("pks", "P2,P1,PL").split(",")
    if role in PKS and j < 8:
        stt = []
        for d in range(4):
            for g in range(ng):
                tm = vTm + 8 * g; st = vSt + 4 * g
                stt += [f"v_pk_add_f32 {v(st,2)}, {v(st,2)}, {v(tm+2*d,2)}", f"v_pk_fma_f32 {v(st+2,2)}, {v(tm+2*d,2)}, {v(tm+2*d,2)}, {v(st+2,2)}"]
    pre = []
    if j == 1:
        _, _, st0 = parts(ng, 0)
        pre = loads[:2*ng] + [f"WAITVM g1@{wid}g"] + gunpack(vG0 + 4); loads = loads[2*ng:]
    if role == "P1" and j == int(opts.get("touch", "-1")):
        loads = loads + srd(dO) + ["s_mov_b64 exec, 1", f"buffer_load_dword {v(vPf+2)}, v23, {s(SO,4)}, 0 offen ;#tc", f"s_mov_b32 {s(t0)}, {9*9216}", f"buffer_load_dword {v(vPf+2)}, v23, {s(SO,4)}, {s(t0)} offen ;#tc", "s_mov_b64 exec, -1"]
    crit = pre + [f"WAITVM x{j}@{wid}"] + un + loads + sc + gnext
    units = [u for c in WSCHED.get(j, []) for u in wu(c)] if nW else []
    if units:
        full = weave(crit + ["SPLIT"] + stt, units)
        i = full.index("SPLIT"); crit = full[:i]; tail = full[i+1:]
    else: tail = stt
    o += crit
    if j == 8: return o + ["s_waitcnt vmcnt(0)"] + BAR + [f"s_setprio {PRS}"] + tail
    o += ([f"s_setprio {LOW}"] if (hi != LOW and not nW) else []) + tail
    o += ([f"WAITVM W{j}@{wid}w"] if nW else []) + BAR
    return o
def prep_role(role):
    ng = 2 if role == "P2" else 1
    nW = role == "PL"
    pro = [f"s_movk_i32 {s(sSo)}, 9216", f"buffer_load_dwordx4 {v(vG0,4)}, {v(T[3])}, {s(SG,4)}, 0 offen ;#g0"] + xl(ng, 0) + prep_setup() + xl(ng, 1) + [f"buffer_load_dwordx4 {v(vG0+4,4)}, {v(T[3])}, {s(SG,4)}, 0 offen offset:128 ;#g1"]
    if nW: pro += srd(dW) + waddr(vWd, f"s_mul_i32 {s(t1)}, {s(sWave)}, {32*1152}") + [f"s_mul_i32 {s(sM)}, {s(sWave)}, 12288"]
    if role == "P1" and (PFW or PFX): pro += pf_setup() + pfx(-1)
    pro += store_setup() + stamp(1)
    code = pro
    for j in range(9):
        code += interval(role, j)
        if j < 2 or (opts.get('prof') == '1' and j < 8): code += stamp(2 + j)
    res = resolve_vm(code)
    code += ["s_branch L_pstats"]
    return [(f"s_waitcnt vmcnt({res[x.split('@')[1]]})" if x.startswith("WAITVM") else x.split(" ;#")[0]) for x in code]
def waddr(dst, rowoff):
    o = []; a = o.append
    a(f"s_mul_i32 {s(t0)}, {s(sCs)}, 384"); a(rowoff); a(f"s_add_u32 {s(t0)}, {s(t0)}, {s(t1)}")
    for n in range(3):
        a(f"v_add_u32 {v(T[4])}, {n*64}, {L_}")
        a(f"v_mul_u32_u24 {v(T[5])}, 2731, {v(T[4])}"); a(f"v_lshrrev_b32 {v(T[5])}, 16, {v(T[5])}")
        a(f"v_mul_u32_u24 {v(T[6])}, 24, {v(T[5])}"); a(f"v_sub_u32 {v(T[4])}, {v(T[4])}, {v(T[6])}")
        a(f"v_and_b32 {v(T[6])}, 2, {v(T[5])}"); a(f"v_xor_b32 {v(T[4])}, {v(T[4])}, {v(T[6])}")
        a(f"v_mul_u32_u24 {v(T[5])}, 1152, {v(T[5])}"); a(f"v_lshl_add_u32 {v(T[4])}, {v(T[4])}, 4, {v(T[5])}"); a(f"v_add_u32 {v(dst+n)}, {s(t0)}, {v(T[4])}")
        a(f"v_xor_b32 {v(T[4])}, 64, {v(dst+n)}"); a(f"v_add_u32 {v(dst+n+3)}, 9216, {v(T[4])}")
    return o
if PRL: a(f"s_setprio {PRL}")
out += srds([dX, dG])
out += prep_role("PL")
a("L_p1:")
out += srds([dX, dG])
out += prep_role("P1")
a("L_p2:")
if PR2: a(f"s_setprio {PR2}")
out += srds([dX, dG])
out += prep_role("P2")[:-1]
a("L_pstats:")
a(f"s_lshl_b32 {s(t0)}, {s(sG0)}, 6"); a(f"s_add_u32 {s(t0)}, {s(t0)}, {STATS}")
a(f"v_bfe_u32 {v(T[2])}, {L_}, 2, 4"); a(f"v_lshlrev_b32 {v(T[2])}, 3, {v(T[2])}"); a(f"v_add_u32 {v(T[2])}, {s(t0)}, {v(T[2])}")
a(f"v_cmp_gt_u32 vcc, 32, {L_}")
p, q, r, w = vSt, vSt + 4, vSt + 2, vSt + 6
a(f"v_add_f32 {v(p)}, {v(p)}, {v(p+1)}"); a(f"v_add_f32 {v(q)}, {v(q)}, {v(q+1)}"); a(f"v_add_f32 {v(r)}, {v(r)}, {v(r+1)}"); a(f"v_add_f32 {v(w)}, {v(w)}, {v(w+1)}")
a(f"v_cndmask_b32 {v(vSh)}, {v(vSh+1)}, {v(vSh)}, vcc"); a("s_nop 0")
a(f"v_permlane32_swap_b32 {v(p)}, {v(q)}"); a(f"v_permlane32_swap_b32 {v(r)}, {v(w)}"); a("s_nop 1")
a(f"v_add_f32 {v(p)}, {v(p)}, {v(q)}"); a(f"v_add_f32 {v(r)}, {v(r)}, {v(w)}"); a("s_nop 1")
for qp in ("[1,0,3,2]", "[2,3,0,1]"):
    a(f"v_add_f32_dpp {v(p)}, {v(p)}, {v(p)} quad_perm:{qp} row_mask:0xf bank_mask:0xf"); a(f"v_add_f32_dpp {v(r)}, {v(r)}, {v(r)} quad_perm:{qp} row_mask:0xf bank_mask:0xf"); a("s_nop 1")
def scal(p, q, r, sh, res):
    o = []; a = o.append
    a(f"v_mul_f32 {v(p)}, 0x3ae38e39, {v(p)}"); a(f"v_mul_f32 {v(r)}, 0x3ae38e39, {v(r)}")
    a(f"v_fma_f32 {v(r)}, -{v(p)}, {v(p)}, {v(r)}"); a(f"v_add_f32 {v(p)}, {v(p)}, {v(sh)}"); a(f"v_max_f32 {v(r)}, 0, {v(r)}")
    a(f"v_cvt_pk_bf16_f32 {v(q)}, {v(p)}, {v(r)}"); a(f"v_and_b32 {v(r)}, {s(sMask)}, {v(q)}"); a(f"v_lshlrev_b32 {v(p)}, 16, {v(q)}")
    a(f"v_add_f32 {v(r)}, 0x3727c5ac, {v(r)}"); a(f"v_sub_f32 {v(p)}, {v(sh)}, {v(p)}"); a(f"v_cvt_pk_bf16_f32 {v(q)}, {v(r)}, {v(r)}"); a(f"v_and_b32 {v(r)}, {s(sMask)}, {v(q)}")
    a(f"v_sqrt_f32 {v(r)}, {v(r)}"); a("s_nop 0"); a(f"v_cvt_pk_bf16_f32 {v(q)}, {v(r)}, {v(r)}"); a(f"v_and_b32 {v(r)}, {s(sMask)}, {v(q)}")
    a(f"v_rcp_f32 {v(res)}, {v(r)}"); a("s_nop 0"); a(f"v_mul_f32 {v(res+1)}, {v(p)}, {v(res)}")
    return o
out += scal(p, q, r, vSh, vRes)
a(f"s_cmp_ge_u32 {s(sWave)}, 4"); a("s_cselect_b32 exec_hi, -1, 0")
a(f"ds_write_b64 {v(T[2])}, {v(vRes,2)}"); a("s_mov_b64 exec, -1")
out += stamp(19)
out += BAR
a("s_setprio 0")
out += srd(dO) + sdbg()
a(f"s_mov_b32 {s(sSo)}, {8*9216}")
a("s_barrier")
out += stamp(22)
a(f"s_cmp_ge_u32 {s(sWave)}, 4"); a("s_cbranch_scc1 L_stB")
st = []
for k in range(3): st.append(f"ds_read2_b64 {v(vTm+4*k,4)}, v{20+k} offset0:0 offset1:1")
for k in range(3): st.append(f"buffer_store_dwordx4 {v(vTm+4*k,4)}, v{23+k}, {s(SO,4)}, 0 offen{ont}")
out += auto_lgkm(st)
for k in range(3): a(f"v_add_u32 v{20+k}, {64*RS}, v{20+k}")
a("s_barrier"); a("s_barrier")
out += stamp(23)
st = []
for k in range(3): st.append(f"ds_read2_b64 {v(vTm+12+4*k,4)}, v{20+k} offset0:0 offset1:1")
for k in range(3): st.append(f"buffer_store_dwordx4 {v(vTm+12+4*k,4)}, v{23+k}, {s(SO,4)}, {s(sSo)} offen{ont}")
out += auto_lgkm(st)
a("s_branch L_fin")
a("L_stB:")
a(f"s_cmp_eq_u32 {s(sWave)}, 4"); a("s_cbranch_scc0 L_st3")
a(f"ds_read2_b64 {v(vTm+12,4)}, {v(vXa)} offset0:0 offset1:1"); a("s_waitcnt lgkmcnt(0)"); a(f"buffer_store_dwordx4 {v(vTm+12,4)}, {v(vXa+1)}, {s(SO,4)}, 0 offen{ont}")
a("L_st3:")
a("s_barrier")
st = []
for k in range(3): st.append(f"ds_read2_b64 {v(vTm+4*k,4)}, v{20+k} offset0:0 offset1:1")
for k in range(3): st.append(f"buffer_store_dwordx4 {v(vTm+4*k,4)}, v{23+k}, {s(SO,4)}, 0 offen{ont}")
out += auto_lgkm(st)
a("s_barrier")
out += stamp(23)
a("s_branch L_fin")

a("L_mfma:")
if PRM: a(f"s_setprio {PRM}")
vWrB, vWr, vXr, vSB, vS = 11, 12, 13, 14, 15
vAcc = 16; vWF = 100; vXF = 124; vEe = 152; vU = 164; NV = 168
vE = vAcc
vMW = vEe
vE = vXF - 24
a(f"v_lshlrev_b32 {v(T[3])}, 4, {L_}")
a(f"v_lshlrev_b32 {v(T[6])}, 5, {L_}")
a(f"v_mov_b32 {v(T[5])}, 0x40000000"); a(f"v_cmp_gt_u32 vcc, 36, {L_}"); a(f"s_add_u32 {s(t3)}, {s(sRb)}, 8160"); a(f"s_mul_i32 {s(t3)}, {s(t3)}, 1152"); a(f"v_cndmask_b32 {v(vE+48)}, {v(T[5])}, {v(T[6])}, vcc")
a(f"s_cmp_eq_u32 {s(sCg)}, 1"); a(f"s_cselect_b32 {s(t3)}, {s(t3)}, 0x40000000")
out += waddr(vMW, f"s_mul_i32 {s(t1)}, {s(sCg)}, {16*1152}")
out += srds([dX, dG, dB, dW])
a(f"s_cmp_ge_u32 {s(sCg)}, 2"); a("s_cbranch_scc1 L_mt")
a(f"buffer_load_dwordx4 {v(vE+8,4)}, {v(vE+48)}, {s(SX,4)}, {s(t3)} offen"); a(f"buffer_load_dwordx4 {v(vE+12,4)}, {v(vE+48)}, {s(SX,4)}, {s(t3)} offen offset:16")
a(f"buffer_load_dwordx4 {v(vE,4)}, {v(vE+48)}, {s(SG,4)}, 0 offen"); a(f"buffer_load_dwordx4 {v(vE+4,4)}, {v(vE+48)}, {s(SG,4)}, 0 offen offset:16")
a("s_branch L_m1")
a("L_mt:")
a(f"s_cmp_eq_u32 {s(sCg)}, 2"); a("s_cbranch_scc0 L_mtb")
a(f"s_mov_b32 m0, {GBF}"); a("s_nop 0"); a(f"buffer_load_dwordx4 {v(T[3])}, {s(SG,4)}, 0 offen lds")
a("s_mov_b64 exec, 0xff"); a(f"buffer_load_dwordx4 {v(T[3])}, {s(SG,4)}, 0 offen offset:1024 lds"); a("s_mov_b64 exec, -1")
a("s_branch L_m1")
a("L_mtb:")
a(f"s_mov_b32 m0, {BBF}"); a("s_nop 0"); a(f"buffer_load_dwordx4 {v(T[3])}, {s(SB,4)}, 0 offen lds")
a("s_mov_b64 exec, 0xff"); a(f"buffer_load_dwordx4 {v(T[3])}, {s(SB,4)}, 0 offen offset:1024 lds"); a("s_mov_b64 exec, -1")
a("L_m1:")
a(f"s_mul_i32 {s(sM)}, {s(sCg)}, 6144")
def mdma(ci, cr):
    o = [f"s_mul_i32 {s(sSoW)}, {s(cr)}, 73728"]
    for n in range(6): o += [f"s_add_u32 m0, {s(sM)}, {ci*WS + n*1024}", "s_nop 0", f"buffer_load_dwordx4 {v(vMW+n)}, {s(SW,4)}, {s(sSoW)} offen lds"]
    return o
out += mdma(0, cA)
a("s_setprio 0")
out += sdbg()
a(f"v_lshrrev_b32 {v(T[0])}, 4, {L_}"); a(f"v_bfe_u32 {v(T[1])}, {L_}, 2, 2")
a(f"v_lshl_add_u32 {v(T[2])}, {v(T[0])}, 3, {v(T[1])}"); a(f"v_mul_u32_u24 {v(T[2])}, 384, {v(T[2])}")
a(f"v_and_b32 {v(T[4])}, 2, {v(T[1])}"); a(f"v_and_b32 {v(T[5])}, 1, {v(T[0])}"); a(f"v_lshl_or_b32 {v(T[4])}, {v(T[5])}, 2, {v(T[4])}")
a(f"v_bfe_u32 {v(T[5])}, {L_}, 1, 1"); a(f"s_lshl_b32 {s(t0)}, {s(sCg)}, 1"); a(f"v_add_u32 {v(T[5])}, {s(t0)}, {v(T[5])}"); a(f"v_xor_b32 {v(T[4])}, {v(T[4])}, {v(T[5])}")
a(f"v_lshl_add_u32 {v(T[2])}, {v(T[4])}, 4, {v(T[2])}"); a(f"v_and_b32 {v(T[5])}, 1, {L_}"); a(f"v_lshl_add_u32 {v(vWrB)}, {v(T[5])}, 3, {v(T[2])}")
a(f"v_and_b32 {v(T[1])}, 7, {L_}"); a(f"v_lshrrev_b32 {v(T[2])}, 1, {v(T[1])}"); a(f"v_and_b32 {v(T[2])}, 2, {v(T[2])}"); a(f"v_xor_b32 {v(T[2])}, {v(T[2])}, {v(T[0])}")
a(f"v_lshl_add_u32 {v(T[2])}, {v(T[1])}, 2, {v(T[2])}"); a(f"v_lshlrev_b32 {v(T[2])}, 4, {v(T[2])}")
a(f"v_bfe_u32 {v(T[4])}, {L_}, 3, 1"); a(f"v_lshl_add_u32 {v(T[2])}, {v(T[4])}, 10, {v(T[2])}")
a(f"v_add_u32 {v(vXr)}, {XB}, {v(T[2])}")
a(f"v_and_b32 {v(T[1])}, 15, {L_}"); a(f"v_min_u32 {v(T[2])}, 2, {v(T[1])}"); a(f"v_mul_u32_u24 {v(T[2])}, 1152, {v(T[2])}")
ZR = XB + 12288
if opts.get("zr", "0") == "1":
    a(f"v_mov_b32 {v(T[4])}, {ZR - XE}"); a(f"v_cmp_lt_u32 vcc, 2, {v(T[1])}"); a("s_nop 1"); a(f"v_cndmask_b32 {v(T[2])}, {v(T[2])}, {v(T[4])}, vcc")
a(f"v_lshl_add_u32 {v(T[2])}, {v(T[0])}, 4, {v(T[2])}"); a(f"v_add_u32 {v(vSB)}, {XE}, {v(T[2])}")
a(f"v_lshlrev_b32 {v(T[6])}, 3, {v(T[1])}"); a(f"v_add_u32 {v(T[6])}, {STATS}, {v(T[6])}")
a(f"v_mul_u32_u24 {v(T[7])}, {RS}, {v(T[1])}"); a(f"v_lshl_add_u32 {v(T[7])}, {v(T[0])}, 3, {v(T[7])}")
a(f"s_lshl_b32 {s(t0)}, {s(sCg)}, 5"); a(f"v_add_u32 {v(T[7])}, {s(t0)}, {v(T[7])}")
a(f"v_mov_b32 {v(vWr)}, {v(vWrB)}"); a(f"s_lshl_b32 {s(t0)}, {s(cA)}, 7"); a(f"v_add_u32 {v(vS)}, {s(t0)}, {v(vSB)}")
W1L = int(opts.get("w1l", "1"))
if W1L == 0: out += mdma(1, cB)
for i in range(84): a(f"v_mov_b32 {v(vAcc+i)}, 0")
if PRM: a(f"s_setprio {PRM}")
a(f"s_cmp_ge_u32 {s(sCg)}, 2"); a("s_cbranch_scc1 L_m3")
Gt = vE + 16; Z = vE + 32; St = vU
a(f"s_waitcnt vmcnt({12 if W1L == 0 else 6})")
for d in range(8):
    a(f"v_lshlrev_b32 {v(Gt+2*d)}, 16, {v(vE+d)}"); a(f"v_and_b32 {v(Gt+2*d+1)}, {s(sMask)}, {v(vE+d)}")
a(f"s_cmp_eq_u32 {s(sCg)}, 1"); a("s_cbranch_scc1 L_mx")
a(f"v_lshlrev_b32 {v(T[4])}, 1, {v(vE+48)}"); a(f"v_add_u32 {v(T[4])}, {GF32}, {v(T[4])}")
a("s_mov_b32 exec_hi, 0xf")
for q_ in range(4): a(f"ds_write_b128 {v(T[4])}, {v(Gt+4*q_,4)} offset:{16*q_}")
a("s_mov_b64 exec, -1")
a("s_branch L_m3")
a("L_mx:")
def wave_sum(regs, tmp):
    o = []
    for dp in ("quad_perm:[1,0,3,2]", "quad_perm:[2,3,0,1]", "row_half_mirror", "row_mirror"):
        o.append("s_nop 1")
        for r_ in regs: o.append(f"v_add_f32_dpp {v(r_)}, {v(r_)}, {v(r_)} {dp} row_mask:0xf bank_mask:0xf")
    for sw in ("v_permlane16_swap_b32", "v_permlane32_swap_b32"):
        for r_, t_ in zip(regs, tmp): o.append(f"v_mov_b32 {v(t_)}, {v(r_)}")
        o.append("s_nop 1")
        for r_, t_ in zip(regs, tmp): o.append(f"{sw} {v(r_)}, {v(t_)}")
        o.append("s_nop 1")
        for r_, t_ in zip(regs, tmp): o.append(f"v_add_f32 {v(r_)}, {v(r_)}, {v(t_)}")
    return o
a(f"s_mov_b32 {s(t0)}, 0x3f803f80"); a(f"v_mov_b32 {v(St)}, 0")
for d in range(8): a(f"v_dot2_f32_bf16 {v(St)}, {v(vE+8+d)}, {s(t0)}, {v(St)}")
for d in range(2): a(f"v_lshlrev_b32 {v(Z+2*d)}, 16, {v(vE+8+d)}"); a(f"v_and_b32 {v(Z+2*d+1)}, {s(sMask)}, {v(vE+8+d)}")
a(f"v_add_f32_dpp {v(St)}, {v(St)}, {v(St)} quad_perm:[1,0,3,2] row_mask:0xf bank_mask:0xf")
for d in range(2, 4): a(f"v_lshlrev_b32 {v(Z+2*d)}, 16, {v(vE+8+d)}"); a(f"v_and_b32 {v(Z+2*d+1)}, {s(sMask)}, {v(vE+8+d)}")
a(f"v_add_f32_dpp {v(St)}, {v(St)}, {v(St)} quad_perm:[2,3,0,1] row_mask:0xf bank_mask:0xf")
a(f"v_mul_f32 {v(St)}, 0xbc800000, {v(St)}"); a(f"v_cvt_pk_bf16_f32 {v(St)}, {v(St)}, {v(St)}"); a(f"v_and_b32 {v(St)}, {s(sMask)}, {v(St)}")
for d in range(4, 6): a(f"v_lshlrev_b32 {v(Z+2*d)}, 16, {v(vE+8+d)}"); a(f"v_and_b32 {v(Z+2*d+1)}, {s(sMask)}, {v(vE+8+d)}")
a(f"v_readlane_b32 s54, {v(St)}, 0")
for d in range(6, 8): a(f"v_lshlrev_b32 {v(Z+2*d)}, 16, {v(vE+8+d)}"); a(f"v_and_b32 {v(Z+2*d+1)}, {s(sMask)}, {v(vE+8+d)}")
S4 = vEe + 8
for i in range(4): a(f"v_mov_b32 {v(S4+i)}, 0")
a(f"v_mov_b32 {v(St)}, s54"); a(f"v_mov_b32 {v(St+1)}, s54"); a(f"v_add_u32 {v(T[5])}, {XE}, {v(vE+48)}")
a("s_mov_b32 exec_hi, 0xf")
for d in range(8): a(f"v_pk_add_f32 {v(Z+2*d,2)}, {v(Z+2*d,2)}, {v(St,2)}")
for d in range(8): a(f"v_pk_mul_f32 {v(Gt+2*d,2)}, {v(Z+2*d,2)}, {v(Gt+2*d,2)}")
for d in range(8): a(f"v_cvt_pk_bf16_f32 {v(vE+d)}, {v(Gt+2*d)}, {v(Gt+2*d+1)}")
a(f"ds_write_b128 {v(T[5])}, {v(vE,4)}"); a(f"ds_write_b128 {v(T[5])}, {v(vE+4,4)} offset:16")
for d in range(8): a(f"v_pk_add_f32 {v(S4,2)}, {v(S4,2)}, {v(Z+2*d,2)}"); a(f"v_pk_fma_f32 {v(S4+2,2)}, {v(Z+2*d,2)}, {v(Z+2*d,2)}, {v(S4+2,2)}")
a("s_mov_b64 exec, -1")
XTAIL = [f"s_cmp_lg_u32 {s(sCg)}, 1", "s_cbranch_scc1 L_xt", f"v_add_f32 {v(S4)}, {v(S4)}, {v(S4+1)}", f"v_add_f32 {v(S4+2)}, {v(S4+2)}, {v(S4+3)}", f"v_sub_f32 {v(St)}, 0, {v(St)}"]
XTAIL += wave_sum([S4, S4 + 2], [S4 + 1, S4 + 3]) + scal(S4, S4 + 1, S4 + 2, St, St + 2) + [f"v_mov_b32 {v(T[4])}, {STATS + 96*8}", f"ds_write_b64 {v(T[4])}, {v(St+2,2)}", "L_xt:"]
a("L_m3:")
if opts.get("zr", "0") == "1":
    a(f"s_cmp_lg_u32 {s(sCg)}, 3"); a("s_cbranch_scc1 L_nz")
    a(f"v_lshlrev_b32 {v(T[4])}, 4, {L_}"); a(f"v_add_u32 {v(T[4])}, {ZR}, {v(T[4])}"); a(f"ds_write_b128 {v(T[4])}, {v(vAcc,4)}"); a(f"ds_write_b128 {v(T[4])}, {v(vAcc,4)} offset:1024")
    a("L_nz:")
a(f"s_mov_b32 {s(sWb)}, 0"); a(f"s_mov_b32 {s(sI)}, 0")
ORD = [6, 0, 1, 2, 3, 4, 5]
def wreads(hh):
    wf = vWF + 12 * hh
    return [x for u in range(3) for x in (f"ds_read_b64_tr_b16 {v(wf+4*u,2)}, {v(vWr)} offset:{u*128 + hh*12288}", f"ds_read_b64_tr_b16 {v(wf+4*u+2,2)}, {v(vWr)} offset:{u*128 + hh*12288 + 1536}")]
def xread(hh, pos, slot=None):
    Tt = ORD[pos]; sl = pos if slot is None else slot
    if Tt == 6: return f"ds_read_b128 {v(vXF+4*sl,4)}, {v(vS)} offset:{hh*64}"
    return f"ds_read_b128 {v(vXF+4*sl,4)}, {v(vXr)} offset:{Tt*2048 + hh*512}"
def mf(hh, pos, slot=None):
    Tt = ORD[pos]; wf = vWF + 12 * hh; sl = pos if slot is None else slot
    return [f"v_mfma_f32_16x16x32_bf16 {v(vAcc+(Tt*3+u)*4,4)}, {v(wf+4*u,4)}, {v(vXF+4*sl,4)}, {v(vAcc+(Tt*3+u)*4,4)}" for u in range(3)]
def part_carry():
    W0 = wreads(0)
    o = []; pend = W0[:2] + [xread(0, 0)] + W0[2:] + [xread(0, p) for p in range(1, TC)]
    k = 0
    for pos in range(TC, 7):
        for x in mf(1, pos):
            n = 2 if k < 3 else 1
            o.append(x); o += pend[:n]; pend = pend[n:]; k += 1
        pend.append(xread(0, pos))
    return o + pend
def part_main(salu):
    o = []; pend = wreads(1); sl = list(salu)
    for pos in range(7):
        for x in mf(0, pos):
            o.append(x)
            if pend: o += pend[:1]; pend = pend[1:]
            o += sl[:1]; sl = sl[1:]
        pend.append(xread(1, pos))
    assert not sl
    pend = pend + [f"v_xor_b32 {v(vXr)}, {XS}, {v(vXr)}", f"v_add_u32 {v(vWr)}, {s(sWb)}, {v(vWrB)}", f"v_add_u32 {v(vS)}, 128, {v(vS)}"]
    for pos in range(TC):
        for x in mf(1, pos):
            o.append(x); o += pend[:1]; pend = pend[1:]
    return o + pend
if W1L == 1: out += mdma(1, cB)
a(f"s_waitcnt vmcnt({0 if W1L == 2 else 6})")
out += stamp(1)
out += BAR
out += stamp(2)
out += wreads(0) + [xread(0, p) for p in range(7)] + XTAIL + ["s_waitcnt lgkmcnt(0)", "s_branch L_mmid"]
a("L_mloop:")
a("s_waitcnt vmcnt(0)")
out += BAR
salu = wrap(sWb, WS, NWS * WS) + [f"s_add_u32 {s(sI)}, {s(sI)}, 1"]
body = auto_lgkm(part_carry() + ["L_mmid:"] + part_main(salu) + [f"s_cmp_lt_u32 {s(sI)}, 8", "s_cbranch_scc1 L_mloop"])
out += body
out += BAR
out += stamp(20)
fin = []
eR = vEe; dRs = vXF + 16
sRl = {6: 2, 0: 4, 1: 6, 2: 2, 3: 4, 4: 6, 5: 2}
M = []
pend = wreads(0) + [xread(0, 0), xread(0, 1), xread(0, 2)]
for pos in range(TC, 7):
    for x in mf(1, pos):
        M.append([x] + pend[:1]); pend = pend[1:]
pend = wreads(1) + [xread(1, 0, 3)]
seq = [(0, 0, 0), (0, 1, 1), (0, 2, 2), (1, 0, 3)]
after = {0: [xread(1, 1, 0)], 1: [xread(1, 2, 1)], 2: [xread(0, 3, 2)], 3: [xread(1, 3, 3)]}
seq += [(1, 1, 0), (1, 2, 1), (0, 3, 2), (1, 3, 3)]
after.update({4: [xread(0, 4, 0)], 5: [xread(1, 4, 1)], 6: [xread(0, 5, 2)], 7: [xread(1, 5, 3)]})
seq += [(0, 4, 0), (1, 4, 1), (0, 5, 2), (1, 5, 3)]
after.update({8: [xread(0, 6, 0)], 9: [xread(1, 6, 1)]})
seq += [(0, 6, 0), (1, 6, 1)]
done_at = {}
for i, (hh, pos, sl) in enumerate(seq):
    for x in mf(hh, pos, sl):
        M.append([x] + pend[:1]); pend = pend[1:]
    pend += after.get(i, [])
    if hh == 1: done_at[pos] = len(M)
assert not pend
def epi_tile(pos, pk):
    Tt = ORD[pos]; sR = sRl[Tt]; o = []
    for u in range(3):
        a_ = vAcc + (Tt * 3 + u) * 4
        if pk:
            for hf in range(2): o.append(f"v_pk_fma_f32 {v(vU+2*hf,2)}, {v(eR+4*u+2*hf,2)}, {v(sR,2)}, {v(dRs+4*u+2*hf,2)} op_sel:[0,1,0] op_sel_hi:[1,1,1]")
            for hf in range(2): o.append(f"v_pk_fma_f32 {v(vU+2*hf,2)}, {v(a_+2*hf,2)}, {v(sR,2)}, {v(vU+2*hf,2)} op_sel:[0,0,0] op_sel_hi:[1,0,1]")
        else:
            for j in range(4): o.append(f"v_fma_f32 {v(vU+j)}, {v(eR+4*u+j)}, {v(sR+1)}, {v(dRs+4*u+j)}")
            for j in range(4): o.append(f"v_fmac_f32 {v(vU+j)}, {v(a_+j)}, {v(sR)}")
        o.append(f"v_cvt_pk_bf16_f32 {v(a_)}, {v(vU)}, {v(vU+1)}"); o.append(f"v_cvt_pk_bf16_f32 {v(a_+1)}, {v(vU+2)}, {v(vU+3)}")
        o.append(f"ds_write_b64 {v(T[7])}, {v(a_,2)} offset:{Tt*16*RS + u*128}")
    if pos + 3 < 7: o.append(f"ds_read_b64 {v(sR,2)}, {v(T[6])} offset:{ORD[pos+3]*128}")
    if pos in (2, 4): o += BAR
    return o
dpp = []
for u in range(3):
    for j in range(4):
        dpp.append(f"v_mov_b32_dpp {v(eR+4*u+j)}, {v(vAcc+(18+u)*4+j)} row_newbcast:1 row_mask:0xf bank_mask:0xf")
        dpp.append(f"v_mov_b32_dpp {v(dRs+4*u+j)}, {v(vAcc+(18+u)*4+j)} row_newbcast:2 row_mask:0xf bank_mask:0xf")
E1POS = int(opts.get("e1pos", "36"))
NSH = int(opts.get("nsh", "1"))
LAG = 4
queue = []; nextpos = 0; started = False
for i, grp in enumerate(M):
    fin += grp
    if i + 1 == E1POS: fin += ["s_barrier"] + [f"ds_read_b64 {v(sRl[ORD[p]],2)}, {v(T[6])} offset:{ORD[p]*128}" for p in range(3)]
    if not started and i + 1 >= done_at[0] + LAG: queue += dpp; started = True
    while started and i + 1 >= E1POS and nextpos < NSH and i + 1 >= done_at[nextpos] + LAG and len(queue) < 40:
        queue += epi_tile(nextpos, False); nextpos += 1
    n = 0
    while queue and n < VPM:
        x = queue.pop(0); fin.append(x)
        if x.startswith("v_"): n += 1
fin += stamp(21)
fin += queue
if nextpos == 7 or len(queue) < 10: fin.append("s_nop 7")
pendw = []
for p in range(nextpos, 7):
    Tt = ORD[p]; sR = sRl[Tt]
    tm_ = vWF + 12 * (p % 2)
    seq_ = []
    for u in range(3):
        for hf in range(2): seq_.append(f"v_pk_fma_f32 {v(tm_+4*u+2*hf,2)}, {v(eR+4*u+2*hf,2)}, {v(sR,2)}, {v(dRs+4*u+2*hf,2)} op_sel:[0,1,0] op_sel_hi:[1,1,1]")
    for u in range(3):
        a_ = vAcc + (Tt * 3 + u) * 4
        for hf in range(2): seq_.append(f"v_pk_fma_f32 {v(tm_+4*u+2*hf,2)}, {v(a_+2*hf,2)}, {v(sR,2)}, {v(tm_+4*u+2*hf,2)} op_sel:[0,0,0] op_sel_hi:[1,0,1]")
    for i_, x in enumerate(seq_):
        fin.append(x)
        if i_ % 4 == 1 and pendw: fin.append(pendw.pop(0))
    if p + 3 < 7: fin.append(f"ds_read_b64 {v(sR,2)}, {v(T[6])} offset:{ORD[p+3]*128}")
    if p in (3, 5): fin += ([f"s_waitcnt lgkmcnt({1 if p + 3 < 7 else 0})", "s_barrier"])
    for u in range(3):
        a_ = vAcc + (Tt * 3 + u) * 4
        fin.append(f"v_cvt_pk_bf16_f32 {v(a_)}, {v(tm_+4*u)}, {v(tm_+4*u+1)}"); fin.append(f"v_cvt_pk_bf16_f32 {v(a_+1)}, {v(tm_+4*u+2)}, {v(tm_+4*u+3)}")
        w_ = f"ds_write_b64 {v(T[7])}, {v(a_,2)} offset:{Tt*16*RS + u*128}"
        if p == 6: fin.append(w_)
        else: pendw.append(w_)
assert nextpos <= 2
fin += stamp(22)
fin += BAR
fin += stamp(23)
out += auto_lgkm(fin)
a("L_fin:")
if PROF:
    out.extend(stamp(24)); A("s_waitcnt vmcnt(0)"); out.extend(stamp(25))
    A(f"s_mul_i32 s68, s2, {NWAVES}"); A(f"s_add_u32 s68, s68, {s(sWave)}"); A("s_lshl_b32 s68, s68, 8"); A("s_add_u32 s68, s68, 0x10000")
    A(f"v_lshlrev_b32 v3, 2, {L_}"); A(f"buffer_store_dword {v(vPr)}, v3, {s(SD,4)}, s68 offen")
if STAMP:
    A("s_waitcnt vmcnt(0)"); A("s_barrier"); A("s_memrealtime s[66:67]"); A("s_waitcnt lgkmcnt(0)")
    A(f"s_cmp_lg_u32 {s(sWave)}, 0"); A("s_cbranch_scc1 L_end")
    A("v_mov_b32 v4, s64"); A("v_mov_b32 v5, s65"); A("v_mov_b32 v6, s66"); A("v_mov_b32 v7, s67")
    A("s_lshl_b32 s68, s2, 4"); A("v_mov_b32 v3, s68"); A("s_mov_b64 exec, 1")
    A(f"buffer_store_dwordx4 v[4:7], v3, {s(SD,4)}, 0 offen")
A("L_end:"); A("s_endpgm")
A('.section .rodata,"a"'); A(".p2align 6"); A(f".amdhsa_kernel {NAME}")
nv = (max(NV, R.n) + 7) // 8 * 8
A(f"  .amdhsa_next_free_vgpr {nv}"); A("  .amdhsa_next_free_sgpr 72"); A(f"  .amdhsa_accum_offset {nv}")
A("  .amdhsa_group_segment_fixed_size 0"); A("  .amdhsa_kernarg_size 56"); A("  .amdhsa_user_sgpr_count 2")
A("  .amdhsa_user_sgpr_kernarg_segment_ptr 1"); A("  .amdhsa_system_sgpr_workgroup_id_x 1"); A(".end_amdhsa_kernel")
NOBAR = opts.get("nobar", "0") == "1"
if NOBAR:
    new = []; act = False
    for x in out:
        if not x: continue
        if x.startswith("L_loopP") or x.startswith("L_mloop"): act = True
        if act and x.startswith("s_cbranch_scc1 L_"): act = False
        if act and x == "s_barrier":
            if x_prev_label_m(new): new.append(f"s_cmp_eq_u32 {s(sI)}, 1"); new.append("s_cbranch_scc0 L_nb"); new.append(x); new.append("L_nb:")
            continue
        new.append(x)
    out = new
FINE = opts.get("fine", "0") == "1"
if FINE:
    new = []; active = False; idx = 0; cnt = 0; lab = 0
    def mark():
        global idx
        if idx < 15:
            new.append(f"s_memtime s[{72+2*idx}:{73+2*idx}]"); idx += 1
    for x in out:
        if not x: continue
        if x.startswith("L_loopP"):
            active = "P"; idx = 0; cnt = 0; new.append(x); mark(); continue
        if x.startswith("L_mloop"):
            active = "M0"; new.append(x); continue
        if active == "M0" and x == "s_barrier":
            new.append(x); lab += 1
            new += [f"s_cmp_eq_u32 {s(sI)}, 4", f"s_cbranch_scc0 L_nf{lab}"] + [f"v_writelane_b32 {v(vPr)}, s{72+2*i}, {30+i}" for i in range(15)] + [f"L_nf{lab}:"]
            active = "M"; idx = 0; cnt = 0; mark(); continue
        if active == "M":
            if x.startswith("v_mfma"):
                cnt += 1
                if cnt % 3 == 1 and cnt > 1: mark()
            if x.startswith("s_cmp_lt_u32"): mark(); active = False
        if active == "P":
            if x.startswith("ds_write_b128") or x.startswith("s_waitcnt vmcnt") or x.startswith("buffer_load_dwordx4 v["):
                mark(); new.append(x); mark(); continue
            if x == "s_waitcnt lgkmcnt(0)": mark()
            if x == "s_barrier":
                mark(); new.append(x); new.append("s_waitcnt lgkmcnt(0)")
                new += [f"v_writelane_b32 {v(vPr)}, s{72+2*i}, {30+i}" for i in range(idx)]
                active = False; continue
        new.append(x)
    out = [x.replace("next_free_sgpr 72", "next_free_sgpr 102") for x in new]
txt = "\n".join(x for x in out if x)
if "CPFN" in txt:
    import subprocess, tempfile, os, re as _re
    open("_g.s", "w").write(txt.replace("CPFN", "1"))
    subprocess.run(["clang", "-x", "assembler", "-target", "amdgcn-amd-amdhsa", "-mcpu=gfx950", "-c", "_g.s", "-o", "_g.o"], check=True)
    d = subprocess.run(["llvm-objdump", "-d", "--mcpu=gfx950", "_g.o"], capture_output=True, text=True).stdout.strip().split("\n")[-1]
    size = int(_re.search(r"// ([0-9A-F]+):", d).group(1), 16) + 4
    n = min(64, max(0, (size - 8192) // 128))
    assert size >= 8192
    txt = txt.replace("CPFN", str(n))
print(txt)
```
